```python
import torch

def _softmax(x, axis=-1):
    return torch.softmax(x, dim=axis)
def _gelu(x):
    return torch.nn.functional.gelu(x, approximate="tanh")
def _silu(x):
    return torch.nn.functional.silu(x)
def _sigmoid(x):
    return torch.sigmoid(x)
def _layernorm(x, axis=-1, eps=1e-5):
    m = x.mean(dim=axis, keepdim=True)
    v = x.var(dim=axis, keepdim=True, unbiased=False)
    return (x - m) / torch.sqrt(v + eps)
def _scatter_add(tgt, idx, src, axis=0):
    return tgt.clone().index_add_(axis, idx, src)
def _segment_sum(src, seg, n):
    out = torch.zeros((n,) + src.shape[1:], dtype=src.dtype)
    return out.index_add_(0, seg, src)
def _pad(x, pw):
    flat = tuple(v for pair in reversed(pw) for v in pair)
    return torch.nn.functional.pad(x, flat)

kernel_name = 'sequential_preLN__gqa_block_cached__glu_gated_reglu__decode'

def setup_inputs():

    _w = (lambda a: (lambda t: t.to(torch.bfloat16) if t.is_floating_point() else t)(torch.as_tensor(a)))
    def _A_setup():
        B, Sq, D = 1, 1, 512
        Hq, Hkv, Sk, Dh = 32, 8, 65536, 128
        assert Hq % Hkv == 0, (Hq, Hkv)
        return {
            "x": _w((lambda *s: torch.randn(*s, dtype=torch.bfloat16) * 0.05)(B, Sq, D)),
            "k_cache": _w((lambda *s: torch.randn(*s, dtype=torch.bfloat16) * 3.2)(B, Hkv, Sk, Dh)),
            "v_cache": _w((lambda *s: torch.randn(*s, dtype=torch.bfloat16) * 1.6)(B, Hkv, Sk, Dh)),
            "wq": _w((lambda *s: torch.randn(*s, dtype=torch.bfloat16) * 3.2)(D, Hq * Dh) * (D ** -0.5)),
            "wo": _w((lambda *s: torch.randn(*s, dtype=torch.bfloat16) * 1.6)(Hq * Dh, D) * ((Hq * Dh) ** -0.5)),
        }
    _A_in = _A_setup()

    def _B_setup():
        B, S, D, F = 1, 1, 512, 1792
        return {
            "x": _w((lambda *s: torch.randn(*s, dtype=torch.bfloat16) * 0.05)(B, S, D)),
            "W_gate": _w((lambda *s: torch.randn(*s, dtype=torch.bfloat16) * 1.6)(D, F) * (2.0 / D) ** 0.5),
            "W_up": _w((lambda *s: torch.randn(*s, dtype=torch.bfloat16) * 1.6)(D, F) * (2.0 / D) ** 0.5),
            "W_down": _w((lambda *s: torch.randn(*s, dtype=torch.bfloat16) * 1.6)(F, D) * (1.0 / F) ** 0.5),
        }
    _B_in = _B_setup()

    return {
        "A_x": _A_in["x"],
        "A_k_cache": _A_in["k_cache"],
        "A_v_cache": _A_in["v_cache"],
        "A_wq": _A_in["wq"],
        "A_wo": _A_in["wo"],
        "B_x": _B_in["x"],
        "B_W_gate": _B_in["W_gate"],
        "B_W_up": _B_in["W_up"],
        "B_W_down": _B_in["W_down"],
    }

def reference(A_x, A_k_cache, A_v_cache, A_wq, A_wo, B_x, B_W_gate, B_W_up, B_W_down):
    def _A_ref(x, k_cache, v_cache, wq, wo):
        B, Sq, D = x.shape
        Hq, Dh = 32, 128
        Hkv = k_cache.shape[1]
        rep = Hq // Hkv
        q = (lambda x, *d: x.permute(*d))((x @ wq).reshape(B, Sq, Hq, Dh), 0, 2, 1, 3)
        k = (lambda x, n, axis: torch.repeat_interleave(x, n, dim=axis))(k_cache, rep, axis=1)
        v = (lambda x, n, axis: torch.repeat_interleave(x, n, dim=axis))(v_cache, rep, axis=1)
        scores = torch.einsum("bhqd,bhkd->bhqk", q, k) * (Dh ** -0.5)
        p = _softmax(scores, axis=-1)
        o = torch.einsum("bhqk,bhkd->bhqd", p, v)
        return (lambda x, *d: x.permute(*d))(o, 0, 2, 1, 3).reshape(B, Sq, Hq * Dh) @ wo

    def _B_ref(x, W_gate, W_up, W_down):
        gate = torch.einsum("bsd,df->bsf", x, W_gate)
        up = torch.einsum("bsd,df->bsf", x, W_up)
        gate = gate * (lambda x, dt: x.to(dt))(gate > 0, gate.dtype)
        h = gate * up
        return torch.einsum("bsf,fd->bsd", h, W_down)

    x = A_x
    h = x + _A_ref(_layernorm(x, axis=-1), A_k_cache, A_v_cache, A_wq, A_wo)
    h2 = h + _B_ref(_layernorm(h, axis=-1), B_W_gate, B_W_up, B_W_down)
    return h2
```

```python
import re

TRANS = ("v_exp_f32", "v_log_f32", "v_rcp_f32", "v_rsq_f32", "v_sqrt_f32", "v_sin_f32", "v_cos_f32")
_reg_re = re.compile(r"^(-|\|)?\|?([vas])(\d+)\|?$")
_rng_re = re.compile(r"^(-)?\|?([vas])\[(\d+):(\d+)\]\|?$")


def regs_of(tok):
    tok = tok.strip()
    if tok == "vcc":
        return ["vcc_lo", "vcc_hi"]
    if tok in ("vcc_lo", "vcc_hi", "exec_lo", "exec_hi", "m0"):
        return [tok]
    if tok == "exec":
        return ["exec_lo", "exec_hi"]
    m = _reg_re.match(tok)
    if m:
        return [m.group(2) + m.group(3)]
    m = _rng_re.match(tok)
    if m:
        return [m.group(2) + str(i) for i in range(int(m.group(3)), int(m.group(4)) + 1)]
    return []


def split_ops(s):
    out, depth, cur = [], 0, ""
    for ch in s:
        if ch == "[":
            depth += 1
        elif ch == "]":
            depth -= 1
        if ch == "," and depth == 0:
            out.append(cur.strip())
            cur = ""
        else:
            cur += ch
    if cur.strip():
        out.append(cur.strip())
    mods = ""
    if out:
        parts = out[-1].split(None, 1)
        out[-1] = parts[0]
        if len(parts) > 1:
            mods = parts[1]
    return out, mods


class Asm:
    KINDS = ("valu_w", "trans_w", "mfma_w", "mfma_c", "dot_w", "st_data", "sg_valu_w", "salu_m0", "exec_valu")

    def __init__(self):
        self.L = []
        self.clk = 0
        self.ev = {}
        self.pending = {}
        self.nops = 0
        self.ninst = 0

    def raw(self, s):
        self.L.append(s)

    def comment(self, s):
        self.L.append("  ; " + s)

    def label(self, name):
        if name in self.pending:
            for snap_clk, snap in self.pending.pop(name):
                for k, (c, x) in snap.items():
                    age = snap_clk - c
                    cur = self.ev.get(k)
                    if cur is None or (self.clk - cur[0]) > age:
                        self.ev[k] = (self.clk - age, x)
        self.L.append(name + ":")

    def flush(self, n=10):
        need = 0
        for (kind, reg), (c, x) in self.ev.items():
            lim = {"valu_w": 2, "trans_w": 1, "mfma_w": 8, "mfma_c": 3, "dot_w": 3, "st_data": 2,
                   "sg_valu_w": 5, "salu_m0": 1, "exec_valu": 5}[kind]
            need = max(need, lim - (self.clk - c - 1))
        if need > 0:
            self._nop(need)

    def _nop(self, n):
        while n > 0:
            k = min(n, 8)
            self.L.append(f"  s_nop {k-1}")
            self.clk += k
            self.nops += 1
            n -= k

    def _need(self, kind, regs, n, cond=None):
        need = 0
        for r in regs:
            e = self.ev.get((kind, r))
            if e is None:
                continue
            if cond is not None and not cond(e[1]):
                continue
            have = self.clk - e[0] - 1
            need = max(need, n - have)
        return need

    def __call__(self, text):
        for line in text.split("\n"):
            line = line.split(";")[0].strip()
            if line:
                self._emit(line)

    def _emit(self, line):
        parts = line.split(None, 1)
        mn = parts[0]
        ops, mods = split_ops(parts[1]) if len(parts) > 1 else ([], "")
        base = re.sub(r"_(e32|e64|dpp|sdwa)$", "", mn)
        if mn == "s_nop":
            self.L.append("  " + line)
            self.clk += int(ops[0], 0) + 1
            return
        is_mfma = mn.startswith("v_mfma")
        is_valu = mn.startswith("v_") and not is_mfma
        is_vmem = mn.startswith(("buffer_", "global_"))
        is_ds = mn.startswith("ds_")
        is_dpp = is_valu and re.search(r"quad_perm|row_shl|row_shr|row_ror|row_mirror|row_half_mirror|row_bcast|wave_", mods + " " + mn) is not None
        R = [regs_of(o) for o in ops]
        need = 0
        writes, reads = [], []
        if is_mfma:
            D, A_, B_, C = R[0], R[1], R[2], (R[3] if len(R) > 3 else [])
            need = max(need, self._need("valu_w", A_ + B_ + C, 2))
            need = max(need, self._need("dot_w", A_ + B_ + C + D, 3))
            need = max(need, self._need("mfma_w", A_ + B_, 8))
            need = max(need, self._need("mfma_w", C, 6, cond=lambda x: x != tuple(C)))
            need = max(need, self._need("mfma_w", D, 8, cond=lambda x: not (x == tuple(D) and tuple(C) == tuple(D))))
            need = max(need, self._need("exec_valu", ["exec_lo"], 4))
            self._nop(need)
            self.L.append("  " + line)
            for r in D:
                self.ev[("mfma_w", r)] = (self.clk, tuple(D))
                self.ev.pop(("valu_w", r), None)
            for r in C:
                self.ev[("mfma_c", r)] = (self.clk, None)
            self.clk += 1
            self.ninst += 1
            return
        if is_valu:
            swap = base.startswith("v_permlane") or base == "v_swap_b32"
            if base.startswith("v_cmp"):
                if len(ops) == 3:
                    writes, reads = R[0], R[1] + R[2]
                else:
                    writes, reads = ["vcc_lo", "vcc_hi"], R[0] + R[1]
                if base.startswith("v_cmpx"):
                    writes = writes + ["exec_lo", "exec_hi"]
            elif swap:
                writes = R[0] + R[1]
                reads = R[0] + R[1]
            elif base in ("v_add_co_u32", "v_sub_co_u32", "v_addc_co_u32", "v_subb_co_u32"):
                writes = R[0] + R[1]
                reads = sum(R[2:], [])
            else:
                writes = R[0]
                reads = sum(R[1:], [])
                if base in ("v_fmac_f32", "v_dot2c_f32_bf16", "v_pk_fmac_f16", "v_writelane_b32") or is_dpp:
                    reads = reads + R[0]
                if base == "v_cndmask_b32" and len(ops) == 3:
                    reads = reads + ["vcc_lo", "vcc_hi"]
            vr = [r for r in reads if r[0] in "va" and not r.startswith("vcc")]
            sr = [r for r in reads if r[0] == "s" or r.startswith("vcc")]
            vw = [r for r in writes if r[0] in "va" and not r.startswith("vcc")]
            if is_dpp or base.startswith("v_permlane"):
                need = max(need, self._need("valu_w", vr, 2))
                need = max(need, self._need("exec_valu", ["exec_lo"], 5))
            if base in ("v_readlane_b32", "v_readfirstlane_b32"):
                need = max(need, self._need("valu_w", vr, 1))
                need = max(need, self._need("exec_valu", ["exec_lo"], 4))
                need = max(need, self._need("sg_valu_w", sr, 4))
            if base == "v_writelane_b32":
                need = max(need, self._need("sg_valu_w", sr, 4))
            need = max(need, self._need("trans_w", vr, 1))
            need = max(need, self._need("sg_valu_w", sr, 2))
            need = max(need, self._need("mfma_w", vr + vw, 8))
            need = max(need, self._need("mfma_c", vw, 3))
            need = max(need, self._need("st_data", vw, 2))
            if base.startswith("v_dot"):
                ab = R[1] + R[2]
                need = max(need, self._need("dot_w", ab, 3))
                need = max(need, self._need("dot_w", vr + vw, 3, cond=lambda x: x != base))
            else:
                need = max(need, self._need("dot_w", vr + vw, 3))
            self._nop(need)
            self.L.append("  " + line)
            for r in writes:
                if r[0] in "va" and not r.startswith("vcc"):
                    self.ev[("valu_w", r)] = (self.clk, None)
                    self.ev.pop(("trans_w", r), None)
                    self.ev.pop(("dot_w", r), None)
                    self.ev.pop(("mfma_w", r), None)
                    if base in TRANS:
                        self.ev[("trans_w", r)] = (self.clk, None)
                    if base.startswith("v_dot"):
                        self.ev[("dot_w", r)] = (self.clk, base)
                elif r.startswith("exec"):
                    self.ev[("exec_valu", "exec_lo")] = (self.clk, None)
                else:
                    self.ev[("sg_valu_w", r)] = (self.clk, None)
            self.clk += 1
            self.ninst += 1
            return
        if is_vmem or is_ds:
            allr = sum(R, [])
            vr = [r for r in allr if r[0] in "va" and not r.startswith("vcc")]
            sr = [r for r in allr if r[0] == "s" or r.startswith("vcc")]
            need = max(need, self._need("mfma_w", vr, 8))
            need = max(need, self._need("dot_w", vr, 3))
            need = max(need, self._need("trans_w", vr, 1))
            if is_vmem:
                need = max(need, self._need("sg_valu_w", sr, 5))
                if " lds" in (" " + mods) or "_lds_" in mn:
                    need = max(need, self._need("salu_m0", ["m0"], 1))
            is_load = "_load" in mn or "_read" in mn
            if is_load:
                need = max(need, self._need("st_data", R[0], 1))
            self._nop(need)
            self.L.append("  " + line)
            if is_vmem and ("store_dwordx4" in mn or "store_dwordx3" in mn or "cmpswap_x2" in mn):
                data = R[0] if mn.startswith("buffer_") else R[1]
                for r in data:
                    self.ev[("st_data", r)] = (self.clk, None)
            if is_load:
                for r in R[0]:
                    for k in ("valu_w", "trans_w", "dot_w"):
                        self.ev.pop((k, r), None)
            self.clk += 1
            self.ninst += 1
            return
        if mn.startswith(("s_cbranch", "s_branch")):
            tgt = ops[0]
            self.L.append("  " + line)
            self.clk += 1
            self.ninst += 1
            self.pending.setdefault(tgt, []).append((self.clk, dict(self.ev)))
            return
        self.L.append("  " + line)
        if ops and R and R[0] == ["m0"]:
            self.ev[("salu_m0", "m0")] = (self.clk, None)
        if ops and R and mn.startswith("s_") and not mn.startswith(("s_cmp", "s_waitcnt", "s_bitcmp")):
            for r in R[0]:
                self.ev.pop(("sg_valu_w", r), None)
        self.clk += 1
        self.ninst += 1

    def text(self):
        return "\n".join(self.L) + "\n"
```

```python
import sys, struct
sys.path.insert(0, "work")
from asmlib import Asm

NAME = "sequential_preLN__gqa_block_cached__glu_gated_reglu__decode"

def f32(x):
    return "0x%08x" % struct.unpack("<I", struct.pack("<f", x))[0]

LOG2E = 1.4426950408889634
SCALE = 128 ** -0.5

EPO, CNT, QG, OG, HG, AG, PA, TS = 0x0, 0x1000, 0x4000, 0x8000, 0xC000, 0xE000, 0x10000, 0x200000
WS_BYTES = 0x400000
LR, LCNT, LO, LML = 0, 1024, 2048, 2048 + 8192
LDS_BYTES = 12288

sX, sKp, sVp, sWq, sWo, sWg, sWu, sWd, sOut, sDbg, sWs = 4, 6, 8, 10, 12, 16, 18, 20, 22, 24, 26
srdK, srdV, srdWS, srdRA, srdRB, srdT = 28, 32, 36, 40, 44, 48
sWave, sHead, sChunk, sRole, sTag, sNB, sU, sTmp = 52, 53, 54, 55, 56, 57, 58, 59
sXc, sY, sSelLo, sSelHi, sCnt, sTmp2, sIdx, sLast = 60, 61, 62, 63, 64, 65, 66, 67
sSkW, sSkI, sHiM, sArr, sTmp3, sL2E = 68, 69, 70, 71, 72, 73
sMask = 74
sT = 80

vLane, vKoff, vVoff, vRole, vA0, vA1, vA2 = 1, 2, 3, 4, 5, 6, 7
vQ = 8
vAcc = 12
vN, vL, vM = 20, 21, 22
vTk = 23
vX = 24
vD = 40
vT = 72
vW = 88
vCntA, vOne, vL4, vTagV = 153, 154, 155, 156
vTB = 157
vWQ = 164
vXP = 180
vXB = 184
vXF = 188
vPoll = 196
NSETS = 7


def srd(n):
    return f"s[{n}:{n+3}]"

def sp(n):
    return f"s[{n}:{n+1}]"

def vr(n, k=1):
    return f"v{n}" if k == 1 else f"v[{n}:{n+k-1}]"

def ar(n, k):
    return f"a[{n}:{n+k-1}]"

DPPF = "row_mask:0xf bank_mask:0xf"

def ror(n):
    n %= 16
    return "quad_perm:[0,1,2,3]" if n == 0 else f"row_ror:{n}"


def gen(T=8, S=12, stamps=False, poll_every=4, maxpoll=200000, first_poll=0, sentB=0, sentC=0, sentD=0, dyn=True):
    a = Asm()
    a.raw(f"; @launch grid=(256,1,1) block=(256,1,1) lds={LDS_BYTES}")
    a.raw('.amdgcn_target "amdgcn-amd-amdhsa--gfx950"')
    a.raw(".text")
    a.raw(f".globl {NAME}_kernel\n.p2align 8\n.type {NAME}_kernel,@function\n{NAME}_kernel:")
    if not dyn:
        S = 16
    NTICK = (16 - S) * 32

    def stamp(i):
        if stamps:
            a(f"s_memrealtime {sp(sT + 2 * i)}")

    def xrow(op, regs, tmps, which):
        for r, t in zip(regs, tmps):
            a(f"v_mov_b32 {vr(t)}, {vr(r)}")
        for r, t in zip(regs, tmps):
            a(f"v_permlane{which}_swap_b32 {vr(r)}, {vr(t)}")
        for r, t in zip(regs, tmps):
            a(f"{op} {vr(r)}, {vr(r)}, {vr(t)}")

    def dpp_steps(op, regs, steps):
        for st in steps:
            for r in regs:
                a(f"{op}_dpp {vr(r)}, {vr(r)}, {vr(r)} {st} {DPPF}")

    ROW_ALL = ["quad_perm:[1,0,3,2]", "quad_perm:[2,3,0,1]", "row_half_mirror", "row_mirror"]

    def halve(which, lo, hi):
        for x, y in zip(lo, hi):
            a(f"v_permlane{which}_swap_b32 {vr(x)}, {vr(y)}")
        for x, y in zip(lo, hi):
            a(f"v_add_f32 {vr(x)}, {vr(x)}, {vr(y)}")

    def halve_dpp(n, lo, hi):
        m0, m1 = (0x3, 0xc) if n == 8 else (0x5, 0xa)
        for x, y in zip(lo, hi):
            a(f"v_add_f32_dpp {vr(x)}, {vr(x)}, {vr(x)} row_ror:{16-n} row_mask:0xf bank_mask:{m0:#x}")
        for x, y in zip(lo, hi):
            a(f"v_add_f32_dpp {vr(x)}, {vr(y)}, {vr(y)} row_ror:{n} row_mask:0xf bank_mask:{m1:#x}")

    def bf16r(dst, src):
        a(f"v_cvt_pk_bf16_f32 {vr(dst)}, {vr(src)}, {vr(src)}")
        a(f"v_lshlrev_b32 {vr(dst)}, 16, {vr(dst)}")

    def unpack(p, lo, hi):
        a(f"v_lshlrev_b32 {vr(lo)}, 16, {vr(p)}")
        a(f"v_and_b32 {vr(hi)}, 0xffff0000, {vr(p)}")

    def layernorm(packed, own, F, t):
        for k, p in enumerate(packed):
            unpack(p, F + 2 * k, F + 2 * k + 1)
        s1, s2, u1, u2, mb, rd = t, t + 1, t + 2, t + 3, t + 4, t + 5
        a(f"v_add_f32 {vr(s1)}, {vr(F)}, {vr(F + 1)}")
        a(f"v_mul_f32 {vr(s2)}, {vr(F)}, {vr(F)}")
        a(f"v_add_f32 {vr(u1)}, {vr(F + 2)}, {vr(F + 3)}")
        a(f"v_mul_f32 {vr(u2)}, {vr(F + 1)}, {vr(F + 1)}")
        for k in range(2, 8):
            a(f"v_fmac_f32 {vr(s2 if k % 2 == 0 else u2)}, {vr(F + k)}, {vr(F + k)}")
            if k >= 4:
                a(f"v_add_f32 {vr(s1 if k % 2 == 0 else u1)}, {vr(s1 if k % 2 == 0 else u1)}, {vr(F + k)}")
        a(f"v_add_f32 {vr(s1)}, {vr(s1)}, {vr(u1)}")
        a(f"v_add_f32 {vr(s2)}, {vr(s2)}, {vr(u2)}")
        for k, p in enumerate(own):
            unpack(p, F + 2 * k, F + 2 * k + 1)
        halve(32, [s1], [s2])
        dpp_steps("v_add_f32", [s1], ROW_ALL)
        xrow("v_add_f32", [s1], [u1], 16)
        a(f"v_mul_f32 {vr(s1)}, {f32(1.0/512)}, {vr(s1)}")
        a(f"v_mov_b32 {vr(s2)}, {vr(s1)}")
        a(f"v_permlane32_swap_b32 {vr(s1)}, {vr(s2)}")
        a(f"v_fma_f32 {vr(s2)}, -{vr(s1)}, {vr(s1)}, {vr(s2)}")
        a(f"v_max_f32 {vr(s2)}, 0, {vr(s2)}")
        a(f"v_cvt_pk_bf16_f32 {vr(u1)}, {vr(s1)}, {vr(s2)}")
        a(f"v_and_b32 {vr(s2)}, 0xffff0000, {vr(u1)}")
        a(f"v_add_f32 {vr(s2)}, {f32(1e-5)}, {vr(s2)}")
        a(f"v_lshlrev_b32 {vr(mb)}, 16, {vr(u1)}")
        bf16r(s2, s2)
        a(f"v_sqrt_f32 {vr(s2)}, {vr(s2)}")
        for k in range(4):
            a(f"v_sub_f32 {vr(F + k)}, {vr(F + k)}, {vr(mb)}")
        bf16r(s2, s2)
        a(f"v_rcp_f32 {vr(rd)}, {vr(s2)}")
        for k, p in enumerate(own):
            a(f"v_cvt_pk_bf16_f32 {vr(p)}, {vr(F + 2 * k)}, {vr(F + 2 * k + 1)}")
        for k, p in enumerate(own):
            unpack(p, F + 2 * k, F + 2 * k + 1)
        for k in range(4):
            a(f"v_mul_f32 {vr(F + k)}, {vr(F + k)}, {vr(rd)}")
        for k, p in enumerate(own):
            a(f"v_cvt_pk_bf16_f32 {vr(p)}, {vr(F + 2 * k)}, {vr(F + 2 * k + 1)}")

    def mk_srd(S_, P, size, add=None):
        if add is None:
            a(f"s_mov_b32 s{S_}, s{P}")
            a(f"s_mov_b32 s{S_+1}, s{P+1}")
        else:
            a(f"s_add_u32 s{S_}, s{P}, s{add}")
            a(f"s_addc_u32 s{S_+1}, s{P+1}, 0")
        a(f"s_mov_b32 s{S_+2}, {size:#x}")
        a(f"s_mov_b32 s{S_+3}, 0x20000")

    a("s_cmp_ge_u32 s2, 256")
    a("s_cbranch_scc1 L_end")
    a("s_load_dwordx16 s[4:19], s[0:1], 0")
    a("s_load_dwordx8 s[20:27], s[0:1], 64")
    stamp(0)
    if stamps:
        for k in range(1, 8):
            a(f"s_mov_b32 s{sT+2*k}, 0")
    a(f"v_lshrrev_b32 v5, 6, v0")
    a(f"v_and_b32 {vr(vLane)}, 63, v0")
    a(f"v_readfirstlane_b32 s{sWave}, v5")
    a(f"s_lshr_b32 s{sHead}, s2, 5")
    a(f"s_and_b32 s{sChunk}, s2, 31")
    a(f"s_and_b32 s{sXc}, s2, 7")
    a(f"s_bfe_u32 s{sY}, s2, 0x20003")
    a(f"s_mov_b32 s{sSelLo}, 0x05040100")
    a(f"s_mov_b32 s{sSelHi}, 0x07060302")
    a(f"s_mov_b32 s{sHiM}, 0xffffff00")
    a(f"s_mov_b32 s{sL2E}, {f32(LOG2E)}")
    a(f"v_lshlrev_b32 {vr(vVoff)}, 4, v0")
    a(f"v_lshrrev_b32 v6, 4, {vr(vLane)}")
    a(f"v_lshlrev_b32 v6, 6, v6")
    a(f"v_bfe_u32 v7, {vr(vLane)}, 2, 2")
    a(f"v_lshlrev_b32 v7, 8, v7")
    a(f"v_and_b32 {vr(vKoff)}, 3, {vr(vLane)}")
    a(f"v_lshlrev_b32 {vr(vKoff)}, 4, {vr(vKoff)}")
    a(f"v_add3_u32 {vr(vKoff)}, {vr(vKoff)}, v6, v7")
    a(f"v_lshlrev_b32 v5, 10, v5")
    a(f"v_add_u32 {vr(vKoff)}, {vr(vKoff)}, v5")
    a(f"v_lshlrev_b32 {vr(vA0)}, 4, {vr(vLane)}")
    a(f"v_lshrrev_b32 {vr(vT)}, 1, v0")
    a(f"v_lshlrev_b32 {vr(vA1)}, 3, {vr(vT)}")
    a(f"s_lshl_b32 s{sTmp}, s{sXc}, 2")
    a(f"s_add_u32 s{sTmp}, s{sTmp}, s{sY}")
    a(f"s_lshl_b32 s{sTmp}, s{sTmp}, 5")
    a(f"s_lshl_b32 s{sTmp2}, s{sHead}, 10")
    a(f"s_add_u32 s{sCnt}, s{sTmp}, s{sTmp2}")
    a(f"v_lshlrev_b32 {vr(vT)}, 15, {vr(vT)}")
    a(f"v_and_b32 {vr(vT+1)}, 1, {vr(vLane)}")
    a(f"v_lshlrev_b32 {vr(vT+2)}, 4, {vr(vT+1)}")
    a(f"v_add3_u32 {vr(vA2)}, {vr(vT)}, {vr(vT+2)}, s{sCnt}")
    a(f"s_lshl_b32 s{sTmp}, s{sHead}, 2")
    a(f"s_add_u32 s{sTmp}, s{sTmp}, s{sWave}")
    a(f"s_lshl_b32 s{sTmp}, s{sTmp}, 8")
    a(f"s_add_u32 s{sTmp}, s{sTmp}, {CNT}")
    a(f"v_mov_b32 {vr(vCntA)}, s{sTmp}")
    a(f"v_mov_b32 {vr(vOne)}, 1")
    a(f"v_mov_b32 {vr(vTk)}, 0")
    a(f"v_lshlrev_b32 {vr(vL4)}, 2, v0")
    a(f"s_lshl_b32 s{sTmp}, s{sHead}, 24")
    a(f"s_lshl_b32 s{sNB}, s{sChunk}, 19")
    a("s_waitcnt lgkmcnt(0)")
    a(f"s_load_dword s{sTag}, {sp(sWs)}, {EPO}")
    a(f"s_cmp_lg_u32 s{sChunk}, 0")
    a("s_cbranch_scc1 L_noclr")
    a("s_mov_b64 exec, 1")
    a(f"global_store_dword {vr(vCntA)}, {vr(vTk)}, {sp(sWs)} sc0 sc1")
    a("s_mov_b64 exec, -1")
    a.label("L_noclr")
    a(f"global_load_dwordx4 {vr(vXP,4)}, {vr(vA0)}, {sp(sX)}")
    a(f"global_load_dwordx2 {vr(vXB,2)}, {vr(vA1)}, {sp(sX)}")
    mk_srd(srdRA, sWq, 0x400000)
    a(f"buffer_load_dwordx4 {vr(vWQ,4)}, {vr(vA2)}, {srd(srdRA)}, 0 offen")
    for j in range(1, 4):
        a(f"s_mov_b32 s{sTmp2}, {j*8192}")
        a(f"buffer_load_dwordx4 {vr(vWQ+4*j,4)}, {vr(vA2)}, {srd(srdRA)}, s{sTmp2} offen")
    mk_srd(srdK, sKp, 0x1000000, sTmp)
    mk_srd(srdV, sVp, 0x1000000, sTmp)
    mk_srd(srdWS, sWs, WS_BYTES)
    mk_srd(srdT, sWs, 0)

    seq = []
    for u in range(4):
        seq += [("K", u, i) for i in range(8)] + [("A", u, 0)] + [("V", u, i) for i in range(8)]
    gend = [9, 17, 26, 34, 43, 51, 60, 68]

    def ring_load(slot, isK, soff):
        a(f"buffer_load_dwordx4 {ar(4 * slot, 4)}, {vr(vKoff if isK else vVoff)}, {srd(srdK if isK else srdV)}, {soff} offen nt")

    def ticket():
        a(f"v_mov_b32 {vr(vTk)}, 1")
        a("s_mov_b64 exec, 1")
        a(f"buffer_atomic_add {vr(vTk)}, {vr(vCntA)}, {srd(srdT)}, 0 offen sc0 sc1")
        a("s_mov_b64 exec, -1")

    def emit_op(op):
        kind, u, i = op
        if kind == "A":
            ticket()
        else:
            a(f"s_add_u32 s{sTmp}, s{sNB}, {(8 * u + i) * 4096}")
            ring_load(u * 16 + (0 if kind == "K" else 8) + i, kind == "K", f"s{sTmp}")

    NF = gend[1]
    for op in seq[:NF]:
        emit_op(op)
    a(f"v_mov_b32 {vr(vT)}, 0")
    a(f"v_mov_b32 {vr(vT+1)}, 0")
    a(f"ds_write_b64 {vr(vT)}, {vr(vT,2)} offset:{LCNT}")
    a(f"v_and_b32 {vr(vA1)}, 1, {vr(vLane)}")
    a(f"v_lshlrev_b32 {vr(vA1)}, 5, {vr(vA1)}")
    a(f"v_lshrrev_b32 {vr(vA2)}, 4, {vr(vLane)}")
    a(f"v_lshlrev_b32 {vr(vA2)}, 3, {vr(vA2)}")
    a(f"s_lshl_b32 s{sCnt}, s{sCnt}, 1")
    a(f"s_add_u32 s{sCnt}, s{sCnt}, {QG}")
    a(f"v_add3_u32 {vr(vA1)}, {vr(vA1)}, {vr(vA2)}, s{sCnt}")
    a(f"v_and_b32 {vr(vA0)}, 3, {vr(vLane)}")
    a(f"v_lshlrev_b32 {vr(vA0)}, 9, {vr(vA0)}")
    a(f"v_lshrrev_b32 {vr(vA2)}, 2, {vr(vLane)}")
    a(f"v_lshlrev_b32 {vr(vA2)}, 5, {vr(vA2)}")
    a(f"s_lshl_b32 s{sTmp}, s{sHead}, 11")
    a(f"s_add_u32 s{sTmp}, s{sTmp}, {QG}")
    a(f"v_add3_u32 {vr(vA0)}, {vr(vA0)}, {vr(vA2)}, s{sTmp}")
    qa = vD
    for k in range(8):
        a(f"v_mov_b32 {vr(qa+k)}, 0")
    a(f"s_waitcnt vmcnt({4 + NF})")
    layernorm([vXP + k for k in range(4)], [vXB, vXB + 1], vXF, vT + 8)
    for j in range(2):
        a(f"s_waitcnt vmcnt({NF + 2 - 2*j})")
        A_, B_ = vWQ + 8 * j, vWQ + 8 * j + 4
        for k in range(4):
            a(f"v_perm_b32 {vr(vT+2*k)}, {vr(B_+k)}, {vr(A_+k)}, s{sSelLo}")
            a(f"v_perm_b32 {vr(vT+2*k+1)}, {vr(B_+k)}, {vr(A_+k)}, s{sSelHi}")
        for k in range(8):
            a(f"v_dot2c_f32_bf16 {vr(qa+k)}, {vr(vT+k)}, {vr(vXB+j)}")
    halve(32, [qa + k for k in range(4)], [qa + 4 + k for k in range(4)])
    halve(16, [qa, qa + 1], [qa + 2, qa + 3])
    halve_dpp(4, [qa], [qa + 1])
    dpp_steps("v_add_f32", [qa], ["row_ror:8", "quad_perm:[2,3,0,1]"])
    a(f"ds_write_b32 {vr(vL4)}, {vr(qa)} offset:{LR}")
    a("s_waitcnt lgkmcnt(0)")
    a(f"s_mul_i32 s{sTag}, s{sTag}, 0x9e3779b1")
    a(f"s_add_u32 s{sTag}, s{sTag}, 0x7f4a7c15")
    a("s_barrier")
    a(f"v_mov_b32 {vr(vTagV)}, s{sTag}")
    a(f"s_cmp_lg_u32 s{sWave}, 0")
    a("s_cbranch_scc1 L_nopub")
    a(f"ds_read2st64_b32 {vr(vT,2)}, {vr(vL4)} offset0:{LR//256} offset1:{LR//256+1}")
    a(f"ds_read2st64_b32 {vr(vT+2,2)}, {vr(vL4)} offset0:{LR//256+2} offset1:{LR//256+3}")
    a(f"v_mov_b32 {vr(vT+5)}, s{sTag}")
    a("s_waitcnt lgkmcnt(0)")
    a(f"v_add_f32 {vr(vT)}, {vr(vT)}, {vr(vT+1)}")
    a(f"v_add_f32 {vr(vT+2)}, {vr(vT+2)}, {vr(vT+3)}")
    a(f"v_add_f32 {vr(vT)}, {vr(vT)}, {vr(vT+2)}")
    a(f"v_mov_b32_dpp {vr(vT+1)}, {vr(vT)} row_ror:12 {DPPF}")
    a(f"v_cvt_pk_bf16_f32 {vr(vT+4)}, {vr(vT)}, {vr(vT+1)}")
    a(f"s_mov_b32 exec_lo, 0x00030003")
    a(f"s_mov_b32 exec_hi, 0x00030003")
    a(f"buffer_store_dwordx2 {vr(vT+4,2)}, {vr(vA1)}, {srd(srdWS)}, 0 offen sc1")
    a("s_mov_b64 exec, -1")
    a.label("L_nopub")
    stamp(1)

    def poll_issue(setn):
        r = vPoll + 8 * setn
        a(f"buffer_load_dwordx4 {vr(r,4)}, {vr(vA0)}, {srd(srdWS)}, 0 offen sc1")
        a(f"buffer_load_dwordx4 {vr(r+4,4)}, {vr(vA0)}, {srd(srdWS)}, 0 offen offset:16 sc1")

    def tagcheck(regs, t):
        a(f"v_xor_b32 {vr(t)}, s{sTag}, {vr(regs[0])}")
        for r in regs[1:]:
            a(f"v_bitop3_b32 {vr(t)}, {vr(t)}, {vr(r)}, s{sTag} bitop3:0xf6")

    def poll_check(setn, ok_label):
        r = vPoll + 8 * setn
        tagcheck([r + 1, r + 3, r + 5, r + 7], vT)
        a(f"v_cmp_ne_u32 vcc, 0, {vr(vT)}")
        a(f"s_cbranch_vccz {ok_label}")

    def init_state():
        for k in range(8):
            a(f"v_mov_b32 {vr(vAcc+k)}, 0")
        for k in range(16):
            a(f"v_mov_b32 {vr(vX+k)}, 0")
        a(f"v_mov_b32 {vr(vM)}, 0xff800000")
        a(f"v_mov_b32 {vr(vL)}, 0")
        a(f"v_mov_b32 {vr(vN)}, 0")
        for k in range(4):
            a(f"v_bfe_u32 {vr(vTB+k)}, {vr(vTagV)}, {8*k}, 8")
        a(f"s_mov_b32 s{sU}, 0")
        a(f"s_mov_b32 s{sLast}, 0")
        a(f"s_lshl_b32 s{sIdx}, s{sXc}, 3")
        a(f"s_add_u32 s{sIdx}, s{sIdx}, s{sHead}")
        a(f"s_cmp_eq_u32 s{sY}, 0")
        a(f"s_cbranch_scc1 L_rB")
        a(f"s_cmp_eq_u32 s{sY}, 3")
        a(f"s_cbranch_scc1 L_rD")
        a(f"s_lshl_b32 s{sTmp}, s{sHead}, 1")
        a(f"s_add_u32 s{sTmp}, s{sTmp}, s{sY}")
        a(f"s_sub_u32 s{sTmp}, s{sTmp}, 1")
        a(f"s_mul_i32 s{sIdx}, s{sXc}, 14")
        a(f"s_add_u32 s{sIdx}, s{sIdx}, s{sTmp}")
        a(f"s_cmp_lt_u32 s{sTmp}, 14")
        a(f"s_cselect_b32 s{sRole}, 1, 3")
        mk_srd(srdRA, sWg, 512 * 3584)
        mk_srd(srdRB, sWu, 512 * 3584)
        a(f"v_lshrrev_b32 {vr(vRole)}, 1, v0")
        a(f"v_mul_u32_u24 {vr(vRole)}, {4*3584}, {vr(vRole)}")
        a(f"v_and_b32 {vr(vT)}, 1, {vr(vLane)}")
        a(f"v_lshlrev_b32 {vr(vT)}, 4, {vr(vT)}")
        a(f"s_lshl_b32 s{sTmp}, s{sIdx}, 5")
        a(f"v_add3_u32 {vr(vRole)}, {vr(vRole)}, {vr(vT)}, s{sTmp}")
        a(f"s_branch L_rdone")
        a.label("L_rB")
        a(f"s_mov_b32 s{sRole}, 0")
        mk_srd(srdRA, sWo, 0x400000)
        mk_srd(srdRB, sWo, 0x400000)
        a(f"v_lshrrev_b32 {vr(vRole)}, 3, {vr(vLane)}")
        a(f"v_lshlrev_b32 {vr(vRole)}, 5, {vr(vRole)}")
        a(f"v_and_b32 {vr(vT)}, 3, {vr(vLane)}")
        a(f"v_lshlrev_b32 {vr(vT)}, 3, {vr(vT)}")
        a(f"v_and_b32 {vr(vT+1)}, 4, {vr(vLane)}")
        a(f"v_add3_u32 {vr(vRole)}, {vr(vRole)}, {vr(vT)}, {vr(vT+1)}")
        a(f"v_lshlrev_b32 {vr(vRole)}, 10, {vr(vRole)}")
        a(f"s_lshl_b32 s{sTmp2}, s{sWave}, 20")
        a(f"s_branch L_rBD")
        a.label("L_rD")
        a(f"s_mov_b32 s{sRole}, 2")
        mk_srd(srdRA, sWd, 1792 * 1024)
        mk_srd(srdRB, sWd, 1792 * 1024)
        a(f"v_lshlrev_b32 {vr(vRole)}, 12, {vr(vLane)}")
        a(f"s_mul_i32 s{sTmp2}, s{sWave}, {448*1024}")
        a.label("L_rBD")
        a(f"s_lshl_b32 s{sTmp}, s{sIdx}, 4")
        a(f"s_add_u32 s{sTmp}, s{sTmp}, s{sTmp2}")
        a(f"v_add_u32 {vr(vRole)}, s{sTmp}, {vr(vRole)}")
        a.label("L_rdone")

    n0 = NF
    stream = []
    polls = []
    oks = []
    nset = 0
    cnt = 0
    for n in range(NF, len(seq)):
        if n == NF + 2:
            init_state()
        if n >= NF + 2 + first_poll and cnt % poll_every == 0:
            poll_issue(nset % NSETS)
            stream += ["p", "p"]
            polls.append((len(stream) - 1, nset % NSETS, n))
            nset += 1
        if n >= NF + 2 + first_poll:
            cnt += 1
        a(f"s_waitcnt vmcnt({T-1})")
        while polls and (len(stream) - 1 - polls[0][0]) >= T - 1:
            _, st, pn = polls.pop(0)
            lab = f"L_qok{len(oks)}"
            oks.append((lab, st, pn, n))
            poll_check(st, lab)
        emit_op(seq[n])
        stream.append("r")
    for idx, st, pn in polls:
        a(f"s_waitcnt vmcnt({len(stream) - 1 - idx})")
        lab = f"L_qok{len(oks)}"
        oks.append((lab, st, pn, len(seq)))
        poll_check(st, lab)
    a(f"s_mov_b32 s{sCnt}, {maxpoll}")
    a.label("L_qspin")
    poll_issue(0)
    a("s_waitcnt vmcnt(0)")
    lab = f"L_qok{len(oks)}"
    oks.append((lab, 0, len(seq), len(seq)))
    poll_check(0, lab)
    a(f"s_sub_u32 s{sCnt}, s{sCnt}, 1")
    a(f"s_cmp_lg_u32 s{sCnt}, 0")
    a("s_cbranch_scc1 L_qspin")
    a(f"s_branch {lab}")
    for lab, st, pn, n in oks:
        a.label(lab)
        r = vPoll + 8 * st
        I = next(k + 1 for k, e in enumerate(gend) if e >= n)
        for op in seq[n:gend[I - 1]]:
            emit_op(op)
        Lg = sum(1 for e in gend if e <= pn)
        for k in range(4):
            a(f"v_mov_b32 {vr(vQ+k)}, {vr(r+2*k)}")
        a(f"s_mov_b32 s{sSkW}, {Lg}")
        a(f"s_mov_b32 s{sSkI}, {I - 2}")
        a("s_branch L_qdone")

    a.label("L_qdone")
    stamp(2)
    a(f"s_cmp_eq_u32 s{sRole}, 3")
    a("s_cbranch_scc1 L_loop")
    a(f"s_cmp_eq_u32 s{sRole}, 1")
    a("s_cbranch_scc1 L_wC")
    for i in range(4):
        if i == 2:
            a(f"s_cmp_eq_u32 s{sRole}, 2")
            a("s_cbranch_scc1 L_loop")
        if i:
            a(f"s_mov_b32 s{sTmp}, {i * 262144}")
        for j in range(4):
            a(f"buffer_load_dwordx4 {vr(vW + 16*i + 4*j, 4)}, {vr(vRole)}, {srd(srdRA)}, {'s%d' % sTmp if i else '0'} offen offset:{j*1024}")
    a("s_branch L_loop")
    a.label("L_wC")
    for j in range(4):
        if j:
            a(f"s_mov_b32 s{sTmp}, {j * 3584}")
        for m in range(2):
            a(f"buffer_load_dwordx4 {vr(vW + 16*m + 4*j, 4)}, {vr(vRole)}, {srd(srdRA if m == 0 else srdRB)}, {'s%d' % sTmp if j else '0'} offen")

    Sa, Sb, P = vT, vT + 1, vT + 2
    TT = [[vT + 4, vT + 5], [vT + 6, vT + 7]]
    Plo, Phi = [vT + 8, vT + 10], [vT + 9, vT + 11]
    t0, t1 = vT + 12, vT + 13

    wmap = {}
    def wperm():
        spare = vW + 64
        for pr in range(8):
            for k in range(4):
                A_, B_ = vW + 8 * pr + k, vW + 8 * pr + 4 + k
                a(f"v_perm_b32 {vr(spare)}, {vr(B_)}, {vr(A_)}, s{sSelLo}")
                a(f"v_perm_b32 {vr(B_)}, {vr(B_)}, {vr(A_)}, s{sSelHi}")
                wmap[(pr, 2 * k)] = spare
                wmap[(pr, 2 * k + 1)] = B_
                spare = A_

    def gwait(lab, n):
        a(f"s_sub_u32 s{sSkW}, s{sSkW}, 1")
        a(f"s_cbranch_scc0 {lab}")
        a(f"s_mov_b32 s{sSkW}, 0")
        a(f"s_waitcnt vmcnt({n})")
        a.label(lab)

    def issue(uu, isK):
        lab = f"L_sk{uu}{'K' if isK else 'V'}"
        a(f"s_sub_u32 s{sSkI}, s{sSkI}, 1")
        a(f"s_cbranch_scc0 {lab}")
        a(f"s_mov_b32 s{sSkI}, 0")
        for i in range(8):
            slot = ((uu + 1) % 4) * 16 + (0 if isK else 8) + i
            if i == 0:
                ring_load(slot, isK, f"s{sNB}")
            else:
                a(f"s_add_u32 s{sTmp}, s{sNB}, {i * 4096}")
                ring_load(slot, isK, f"s{sTmp}")
        if isK:
            ticket()
        a.label(lab)

    a.label("L_loop")
    for uu in range(4):
        gwait(f"L_gwK{uu}", 8)
        for i in range(8):
            a(f"v_mfma_f32_16x16x32_bf16 {vr(vD+4*i,4)}, {ar((uu*16+i)*4,4)}, {vr(vQ,4)}, 0")
        a(f"s_add_u32 s{sU}, s{sU}, 1")
        a(f"s_add_u32 s{sNB}, s{sNB}, 0x8000")
        a(f"s_cmp_lt_u32 s{sU}, {S}")
        a(f"s_cbranch_scc1 L_st{uu}")
        if dyn:
            a(f"v_readfirstlane_b32 s{sTmp}, {vr(vTk)}")
            a(f"s_and_b32 s{sNB}, s{sTmp}, 31")
            a(f"s_lshl_b32 s{sNB}, s{sNB}, 19")
            a(f"s_lshr_b32 s{sTmp2}, s{sTmp}, 5")
            a(f"s_add_u32 s{sTmp2}, s{sTmp2}, {S}")
            a(f"s_lshl_b32 s{sTmp2}, s{sTmp2}, 15")
            a(f"s_add_u32 s{sNB}, s{sNB}, s{sTmp2}")
            a(f"s_cmp_lt_u32 s{sTmp}, {NTICK}")
            a(f"s_cbranch_scc1 L_st{uu}")
        a(f"s_mov_b32 s{sLast}, 1")
        a(f"s_mov_b32 s{sNB}, 0")
        a(f"s_mov_b32 s{srdK+2}, 0")
        a(f"s_mov_b32 s{srdV+2}, 0")
        a(f"s_mov_b32 s{sU}, 0")
        a.label(f"L_st{uu}")
        if dyn:
            a(f"s_cmp_ge_u32 s{sU}, {S-1}")
            a(f"s_cselect_b32 s{srdT+2}, {WS_BYTES}, 0")
        issue(uu, True)
        for step in range(2):
            for j in range(4):
                for half in range(2):
                    for spn in range(2):
                        s = 2 * spn + step
                        dst = TT[half][spn]
                        src = vD + 4 * (4 * half + j) + s
                        if step == 0:
                            a(f"v_mov_b32_dpp {vr(dst)}, {vr(src)} {ror(4*(j-s))} row_mask:0xf bank_mask:{1<<j:#x}")
                        else:
                            a(f"v_add_f32_dpp {vr(dst)}, {vr(src)}, {vr(dst)} {ror(4*(j-s))} row_mask:0xf bank_mask:{1<<j:#x}")
        a(f"v_add_f32 {vr(Sa)}, {vr(TT[0][0])}, {vr(TT[0][1])}")
        a(f"v_add_f32 {vr(Sb)}, {vr(TT[1][0])}, {vr(TT[1][1])}")
        a(f"v_cvt_pk_bf16_f32 {vr(P)}, {vr(Sa)}, {vr(Sb)}")
        unpack(P, Sa, Sb)
        a(f"v_mul_f32 {vr(Sa)}, {f32(SCALE)}, {vr(Sa)}")
        a(f"v_mul_f32 {vr(Sb)}, {f32(SCALE)}, {vr(Sb)}")
        a(f"v_cvt_pk_bf16_f32 {vr(P)}, {vr(Sa)}, {vr(Sb)}")
        unpack(P, Sa, Sb)
        a(f"v_max_f32 {vr(t0)}, {vr(Sa)}, {vr(Sb)}")
        a(f"v_cmp_gt_f32 vcc, {vr(t0)}, {vr(vM)}")
        a(f"s_cbranch_vccz L_nors{uu}")
        dpp_steps("v_max_f32", [t0], ["row_ror:4", "row_ror:8"])
        xrow("v_max_f32", [t0], [t1], 16)
        xrow("v_max_f32", [t0], [t1], 32)
        a(f"v_max_f32 {vr(t0)}, {vr(t0)}, {vr(vM)}")
        a(f"v_sub_f32 {vr(t1)}, {vr(vM)}, {vr(t0)}")
        a(f"v_mul_f32 {vr(t1)}, {f32(LOG2E)}, {vr(t1)}")
        a(f"v_exp_f32 {vr(t1)}, {vr(t1)}")
        a(f"v_mov_b32 {vr(vM)}, {vr(t0)}")
        a(f"v_mul_f32 {vr(vN)}, {f32(-LOG2E)}, {vr(t0)}")
        a(f"v_mul_f32 {vr(vL)}, {vr(vL)}, {vr(t1)}")
        for k in range(8):
            a(f"v_mul_f32 {vr(vAcc+k)}, {vr(vAcc+k)}, {vr(t1)}")
        a.label(f"L_nors{uu}")
        a(f"v_fma_f32 {vr(Sa)}, {vr(Sa)}, s{sL2E}, {vr(vN)}")
        a(f"v_fma_f32 {vr(Sb)}, {vr(Sb)}, s{sL2E}, {vr(vN)}")
        a(f"v_exp_f32 {vr(Sa)}, {vr(Sa)}")
        a(f"v_exp_f32 {vr(Sb)}, {vr(Sb)}")
        a(f"v_add_f32 {vr(vL)}, {vr(vL)}, {vr(Sa)}")
        a(f"v_cvt_pk_bf16_f32 {vr(P)}, {vr(Sa)}, {vr(Sb)}")
        a(f"v_add_f32 {vr(vL)}, {vr(vL)}, {vr(Sb)}")
        a(f"v_and_b32 {vr(Plo[0])}, 0xffff, {vr(P)}")
        a(f"v_lshlrev_b32 {vr(Phi[0])}, 16, {vr(P)}")
        a(f"v_lshrrev_b32 {vr(Plo[1])}, 16, {vr(P)}")
        a(f"v_and_b32 {vr(Phi[1])}, 0xffff0000, {vr(P)}")
        for i0 in (0, 2, 4, 6):
            for c in range(2):
                for i in (i0, i0 + 1):
                    half, j = i >> 2, i & 3
                    src = (Plo if c == 0 else Phi)[half]
                    for x in range(2):
                        bank = 2 * x + c
                        a(f"v_mov_b32_dpp {vr(vX+2*i+x)}, {vr(src)} {ror(4*(bank-j))} row_mask:0xf bank_mask:{1<<bank:#x}")
        gwait(f"L_gwV{uu}", 9)
        for i in range(8):
            sl = (uu * 16 + 8 + i) * 4
            a(f"v_mfma_f32_16x16x16_bf16 {vr(vAcc,4)}, {ar(sl,2)}, {vr(vX+2*i,2)}, {vr(vAcc,4)}")
            a(f"v_mfma_f32_16x16x16_bf16 {vr(vAcc+4,4)}, {ar(sl+2,2)}, {vr(vX+2*i,2)}, {vr(vAcc+4,4)}")
        a(f"s_cmp_lg_u32 s{sLast}, 0")
        a("s_cbranch_scc1 L_done")
        issue(uu, False)
    a(f"s_cmp_lg_u32 s{sU}, 8")
    a("s_cbranch_scc1 L_loop")
    wperm()
    a.flush()
    a("s_branch L_loop")
    a.label("L_done")
    stamp(3)

    a(f"v_lshlrev_b32 {vr(vA0)}, 4, {vr(vLane)}")
    a(f"v_lshlrev_b32 {vr(vA1)}, 3, {vr(vLane)}")
    a(f"s_lshl_b32 s{sTmp}, s{sWave}, 11")
    a(f"v_add_u32 {vr(vA2)}, s{sTmp}, {vr(vA0)}")
    a(f"v_lshlrev_b32 {vr(t0)}, 1, {vr(vL4)}")
    a(f"v_mov_b32 {vr(t1)}, 0")
    a(f"ds_write_b64 {vr(t0)}, {vr(vN,2)} offset:{LML}")
    a(f"ds_write_b128 {vr(vA2)}, {vr(vAcc,4)} offset:{LO}")
    a(f"ds_write_b128 {vr(vA2)}, {vr(vAcc+4,4)} offset:{LO+1024}")
    a("s_mov_b64 exec, 1")
    a(f"ds_add_rtn_u32 {vr(t1)}, {vr(t1)}, {vr(vOne)} offset:{LCNT}")
    a("s_mov_b64 exec, -1")
    ML = vX
    OO = vD
    for w in range(4):
        a(f"ds_read_b64 {vr(ML+2*w,2)}, {vr(vA1)} offset:{LML + w*512}")
    for w in range(4):
        for t in range(2):
            a(f"ds_read_b128 {vr(OO+8*w+4*t,4)}, {vr(vA0)} offset:{LO + w*2048 + t*1024}")
    a(f"v_and_b32 {vr(vA0)}, 3, {vr(vLane)}")
    a(f"v_lshlrev_b32 {vr(vA0)}, 10, {vr(vA0)}")
    a(f"v_lshrrev_b32 {vr(vA1)}, 4, {vr(vLane)}")
    a(f"v_lshlrev_b32 {vr(vA1)}, 7, {vr(vA1)}")
    a(f"v_and_b32 {vr(vA2)}, 12, {vr(vLane)}")
    a(f"v_lshlrev_b32 {vr(vA2)}, 2, {vr(vA2)}")
    a(f"v_add3_u32 {vr(vA1)}, {vr(vA0)}, {vr(vA1)}, {vr(vA2)}")
    a(f"s_lshl_b32 s{sTmp}, s2, 12")
    a(f"s_add_u32 s{sTmp}, s{sTmp}, {PA}")
    a("s_waitcnt lgkmcnt(12)")
    a(f"v_readfirstlane_b32 s{sArr}, {vr(t1)}")
    a(f"s_cmp_lg_u32 s{sArr}, 3")
    a("s_cbranch_scc1 L_nopa")
    a("s_waitcnt lgkmcnt(8)")
    R = vT
    a(f"v_min_f32 {vr(R)}, {vr(ML)}, {vr(ML+2)}")
    a(f"v_min3_f32 {vr(R)}, {vr(R)}, {vr(ML+4)}, {vr(ML+6)}")
    for w in range(4):
        a(f"v_sub_f32 {vr(ML+2*w)}, {vr(R)}, {vr(ML+2*w)}")
    for w in range(4):
        a(f"v_exp_f32 {vr(ML+2*w)}, {vr(ML+2*w)}")
    a(f"v_mov_b32 {vr(R+2)}, s{sTag}")
    a(f"v_mul_f32 {vr(R+1)}, {vr(ML)}, {vr(ML+1)}")
    for w in range(1, 4):
        a(f"v_fmac_f32 {vr(R+1)}, {vr(ML+2*w)}, {vr(ML+2*w+1)}")
    a("s_waitcnt lgkmcnt(0)")
    for t in range(2):
        for k in range(4):
            a(f"v_mul_f32 {vr(OO+4*t+k)}, {vr(OO+4*t+k)}, {vr(ML)}")
        if t == 0:
            a(f"v_add_f32_dpp {vr(R+1)}, {vr(R+1)}, {vr(R+1)} row_ror:4 {DPPF}")
        for w in range(1, 4):
            for k in range(4):
                a(f"v_fmac_f32 {vr(OO+4*t+k)}, {vr(OO+8*w+4*t+k)}, {vr(ML+2*w)}")
            if t == 0 and w == 1:
                a(f"v_add_f32_dpp {vr(R+1)}, {vr(R+1)}, {vr(R+1)} row_ror:8 {DPPF}")
            if t == 0 and w == 2:
                a(f"v_mov_b32 {vr(t1)}, {vr(R+1)}")
            if t == 0 and w == 3:
                a(f"v_permlane16_swap_b32 {vr(R+1)}, {vr(t1)}")
            if t == 1 and w == 1:
                a(f"v_permlane32_swap_b32 {vr(R+1)}, {vr(t1)}")
        for k in range(4):
            a(f"v_and_or_b32 {vr(OO+4*t+k)}, {vr(OO+4*t+k)}, s{sHiM}, {vr(vTB+k)}")
        if t == 0:
            a(f"v_add_f32 {vr(R+1)}, {vr(R+1)}, {vr(t1)}")
            a(f"v_mov_b32 {vr(t1)}, {vr(R+1)}")
        else:
            a(f"v_add_f32 {vr(R+1)}, {vr(R+1)}, {vr(t1)}")
        a(f"buffer_store_dwordx4 {vr(OO+4*t,4)}, {vr(vA1)}, {srd(srdWS)}, s{sTmp} offen offset:{64*t} sc1")
    a("s_mov_b64 exec, 15")
    a(f"buffer_store_dwordx3 {vr(R,3)}, {vr(vA0)}, {srd(srdWS)}, s{sTmp} offen offset:512 sc1")
    a("s_mov_b64 exec, -1")
    stamp(4)
    a.label("L_nopa")
    a("s_waitcnt lgkmcnt(0)")

    def spin(name, issue_fn, check_fn):
        a(f"s_mov_b32 s{sCnt}, {maxpoll}")
        a.label(f"L_{name}")
        issue_fn()
        a("s_waitcnt vmcnt(0)")
        check_fn()
        a(f"s_cbranch_vccz L_{name}_ok")
        a(f"s_sub_u32 s{sCnt}, s{sCnt}, 1")
        a(f"s_cmp_lg_u32 s{sCnt}, 0")
        a(f"s_cbranch_scc1 L_{name}")
        a.label(f"L_{name}_ok")

    def chk(regs):
        def f():
            if len(regs) == 1:
                a(f"v_cmp_ne_u32 vcc, s{sTag}, {vr(regs[0])}")
            else:
                tagcheck(regs, t0)
                a(f"v_cmp_ne_u32 vcc, 0, {vr(t0)}")
        return f

    a(f"s_cmp_lg_u32 s{sArr}, 0")
    a("s_cbranch_scc1 L_noA")
    a(f"v_lshrrev_b32 {vr(vA0)}, 2, {vr(vLane)}")
    a(f"v_lshlrev_b32 {vr(vA0)}, 12, {vr(vA0)}")
    a(f"v_and_b32 {vr(vA1)}, 3, {vr(vLane)}")
    a(f"v_lshlrev_b32 {vr(vA1)}, 4, {vr(vA1)}")
    a(f"s_lshl_b32 s{sTmp}, s{sXc}, 6")
    a(f"v_add3_u32 {vr(vA1)}, {vr(vA1)}, {vr(vA0)}, s{sTmp}")
    a(f"s_lshl_b32 s{sTmp}, s{sHead}, 17")
    a(f"s_lshl_b32 s{sTmp2}, s{sY}, 10")
    a(f"s_add_u32 s{sTmp}, s{sTmp}, s{sTmp2}")
    a(f"s_add_u32 s{sTmp}, s{sTmp}, {PA}")
    a(f"s_add_u32 s{sTmp2}, s{sTmp}, 0x10000")
    a(f"v_and_b32 {vr(vA2)}, 0x30, {vr(vLane)}")
    a(f"v_and_b32 {vr(t1)}, 2, {vr(vLane)}")
    a(f"v_lshl_add_u32 {vr(vA2)}, {vr(t1)}, 2, {vr(vA2)}")
    a(f"s_lshl_b32 s{sTmp3}, s2, 6")
    a(f"s_add_u32 s{sTmp3}, s{sTmp3}, {OG}")
    G0, G1, L0, L1 = vD, vD + 4, vD + 8, vD + 12

    def issA():
        a(f"buffer_load_dwordx3 {vr(L0,3)}, {vr(vA0)}, {srd(srdWS)}, s{sTmp} offen offset:512 sc1")
        a(f"buffer_load_dwordx3 {vr(L1,3)}, {vr(vA0)}, {srd(srdWS)}, s{sTmp2} offen offset:512 sc1")
        a(f"buffer_load_dwordx4 {vr(G0,4)}, {vr(vA1)}, {srd(srdWS)}, s{sTmp} offen sc1")
        a(f"buffer_load_dwordx4 {vr(G1,4)}, {vr(vA1)}, {srd(srdWS)}, s{sTmp2} offen sc1")

    def chkA():
        a(f"v_xor_b32 {vr(t1)}, {vr(G0)}, {vr(vTB)}")
        tagcheck([L0 + 2, L1 + 2], t0)
        for r, k in [(G0 + 1, 1), (G0 + 2, 2), (G0 + 3, 3), (G1, 0), (G1 + 1, 1), (G1 + 2, 2), (G1 + 3, 3)]:
            a(f"v_bitop3_b32 {vr(t1)}, {vr(t1)}, {vr(r)}, {vr(vTB+k)} bitop3:0xf6")
        a(f"v_min_f32 {vr(vT)}, {vr(L0)}, {vr(L1)}")
        a(f"v_lshlrev_b32 {vr(t1)}, 24, {vr(t1)}")
        a(f"v_or_b32 {vr(t0)}, {vr(t0)}, {vr(t1)}")
        a(f"v_cmp_ne_u32 vcc, 0, {vr(t0)}")
    spin("hA", issA, chkA)
    Mx, Ls = vT, vT + 1
    dpp_steps("v_min_f32", [Mx], ["row_ror:4", "row_ror:8"])
    xrow("v_min_f32", [Mx], [t1], 16)
    xrow("v_min_f32", [Mx], [t1], 32)
    a(f"v_sub_f32 {vr(L0)}, {vr(Mx)}, {vr(L0)}")
    a(f"v_sub_f32 {vr(L1)}, {vr(Mx)}, {vr(L1)}")
    a(f"v_exp_f32 {vr(L0)}, {vr(L0)}")
    a(f"v_exp_f32 {vr(L1)}, {vr(L1)}")
    a(f"v_mov_b32 {vr(vT+5)}, s{sTag}")
    a(f"v_mul_f32 {vr(Ls)}, {vr(L0)}, {vr(L0+1)}")
    a(f"v_fmac_f32 {vr(Ls)}, {vr(L1)}, {vr(L1+1)}")
    for k in range(4):
        a(f"v_mul_f32 {vr(G0+k)}, {vr(G0+k)}, {vr(L0)}")
    a(f"v_add_f32_dpp {vr(Ls)}, {vr(Ls)}, {vr(Ls)} row_ror:4 {DPPF}")
    for k in range(4):
        a(f"v_fmac_f32 {vr(G0+k)}, {vr(G1+k)}, {vr(L1)}")
    a(f"v_add_f32_dpp {vr(Ls)}, {vr(Ls)}, {vr(Ls)} row_ror:8 {DPPF}")
    a(f"v_mov_b32 {vr(t1)}, {vr(Ls)}")
    halve(32, [G0, G0 + 1, Ls], [G0 + 2, G0 + 3, t1])
    a(f"v_mov_b32 {vr(t1)}, {vr(Ls)}")
    halve(16, [G0, Ls], [G0 + 1, t1])
    a(f"v_rcp_f32 {vr(Ls)}, {vr(Ls)}")
    dpp_steps("v_add_f32", [G0], ["row_ror:4", "row_ror:8"])
    a(f"v_mul_f32 {vr(G0)}, {vr(G0)}, {vr(Ls)}")
    a(f"v_mov_b32_dpp {vr(t1)}, {vr(G0)} quad_perm:[1,1,3,3] {DPPF}")
    a(f"v_cvt_pk_bf16_f32 {vr(vT+4)}, {vr(G0)}, {vr(t1)}")
    a(f"s_mov_b32 exec_lo, 0x00050005")
    a(f"s_mov_b32 exec_hi, 0x00050005")
    a(f"buffer_store_dwordx2 {vr(vT+4,2)}, {vr(vA2)}, {srd(srdWS)}, s{sTmp3} offen sc1")
    a("s_mov_b64 exec, -1")
    stamp(5)
    a.label("L_noA")

    a(f"s_cmp_eq_u32 s{sRole}, 3")
    a("s_cbranch_scc1 L_fin")
    acc = vD + 16
    for k in range(16):
        a(f"v_mov_b32 {vr(acc+k)}, 0")
    a(f"v_lshlrev_b32 {vr(vA2)}, 2, {vr(vLane)}")
    a(f"v_mov_b32 {vr(vT+5)}, s{sTag}")
    a(f"v_mov_b32 {vr(vT+6)}, 0")
    a(f"s_cmp_eq_u32 s{sRole}, 1")
    a("s_cbranch_scc1 L_roleC")
    a(f"v_lshrrev_b32 {vr(vA1)}, 4, {vr(vLane)}")
    a(f"v_and_b32 {vr(vT+7)}, 4, {vr(vLane)}")
    a(f"v_lshlrev_b32 {vr(vT+7)}, 2, {vr(vT+7)}")
    a(f"v_sub_u32 {vr(vT+7)}, 16, {vr(vT+7)}")
    a(f"s_cmp_eq_u32 s{sRole}, 2")
    a("s_cbranch_scc1 L_roleD")

    def cross(reg):
        a(f"ds_write_b32 {vr(vL4)}, {vr(reg)} offset:{LR}")
        a("s_mov_b64 exec, 1")
        a(f"ds_add_rtn_u32 {vr(vT+6)}, {vr(vT+6)}, {vr(vOne)} offset:{LCNT+4}")
        a("s_mov_b64 exec, -1")
        a(f"ds_read2st64_b32 {vr(vT,2)}, {vr(vA2)} offset0:{LR//256} offset1:{LR//256+1}")
        a(f"ds_read2st64_b32 {vr(vT+2,2)}, {vr(vA2)} offset0:{LR//256+2} offset1:{LR//256+3}")
        a("s_waitcnt lgkmcnt(0)")
        a(f"v_readfirstlane_b32 s{sArr}, {vr(vT+6)}")
        a(f"v_add_f32 {vr(vT)}, {vr(vT)}, {vr(vT+1)}")
        a(f"v_add_f32 {vr(vT+2)}, {vr(vT+2)}, {vr(vT+3)}")
        a(f"s_cmp_lg_u32 s{sArr}, 3")
        a("s_cbranch_scc1 L_fin")
        a(f"v_add_f32 {vr(vT)}, {vr(vT)}, {vr(vT+2)}")

    def bd_finish(res):
        halve(32, [acc + k for k in range(4)], [acc + 4 + k for k in range(4)])
        halve(16, [acc, acc + 1], [acc + 2, acc + 3])
        halve_dpp(4, [acc], [acc + 1])
        dpp_steps("v_add_f32", [acc], ["row_ror:8", "quad_perm:[2,3,0,1]", "quad_perm:[1,0,3,2]"])
        cross(acc)
        bf16r(vT, vT)
        a(f"v_add_f32 {vr(vT)}, {vr(vT)}, {vr(res)}")
        a(f"v_mov_b32_dpp {vr(vT+1)}, {vr(vT)} row_ror:12 {DPPF}")
        a(f"v_cvt_pk_bf16_f32 {vr(vT+4)}, {vr(vT)}, {vr(vT+1)}")
        a(f"s_mov_b32 exec_lo, 0x00010001")
        a(f"s_mov_b32 exec_hi, 0x00010001")

    RS = vX
    a(f"s_lshl_b32 s{sTmp}, s{sIdx}, 4")
    a(f"v_lshl_add_u32 {vr(vA0)}, {vr(vA1)}, 2, s{sTmp}")
    a(f"global_load_dword {vr(RS)}, {vr(vA0)}, {sp(sX)}")
    a(f"v_lshlrev_b32 {vr(vA1)}, 3, {vr(vA1)}")
    a(f"s_lshl_b32 s{sTmp2}, s{sIdx}, 6")
    a(f"s_add_u32 s{sTmp2}, s{sTmp2}, {HG}")
    if sentB:
        a(f"v_lshlrev_b32 {vr(vA0)}, 12, {vr(vLane)}")
        a(f"s_lshl_b32 s{sTmp}, s{sWave}, 18")
        a(f"s_add_u32 s{sTmp}, s{sTmp}, {PA}")
        spin("sB", lambda: a(f"buffer_load_dword {vr(vD)}, {vr(vA0)}, {srd(srdWS)}, s{sTmp} offen offset:520 sc1"), chk([vD]))
        a(f"s_sleep {sentB}")
    a(f"s_lshl_b32 s{sTmp}, s{sWave}, 12")
    a(f"s_add_u32 s{sTmp}, s{sTmp}, {OG}")
    a(f"v_lshlrev_b32 {vr(vA0)}, 4, {vr(vLane)}")
    a("s_waitcnt vmcnt(0)")
    a(f"v_lshlrev_b32 {vr(RS)}, {vr(vT+7)}, {vr(RS)}")
    a(f"v_and_b32 {vr(RS)}, 0xffff0000, {vr(RS)}")

    def issB():
        for i in range(4):
            a(f"buffer_load_dwordx4 {vr(vD+4*i,4)}, {vr(vA0)}, {srd(srdWS)}, s{sTmp} offen offset:{i*1024} sc1")
    spin("hB", issB, chk([vD + 2 * i + 1 for i in range(8)]))
    stamp(6)
    for i in range(4):
        for rp in range(2):
            for c in range(8):
                a(f"v_dot2c_f32_bf16 {vr(acc+c)}, {vr(wmap[(2*i+rp, c)])}, {vr(vD+4*i+2*rp)}")
    bd_finish(RS)
    a(f"buffer_store_dwordx2 {vr(vT+4,2)}, {vr(vA1)}, {srd(srdWS)}, s{sTmp2} offen sc1")
    a("s_branch L_fin")

    a.label("L_roleD")
    a(f"v_lshlrev_b32 {vr(vA0)}, 3, {vr(vA1)}")
    a(f"s_lshl_b32 s{sTmp}, s{sIdx}, 6")
    a(f"s_add_u32 s{sTmp}, s{sTmp}, {HG}")
    spin("hD1", lambda: a(f"buffer_load_dwordx2 {vr(RS,2)}, {vr(vA0)}, {srd(srdWS)}, s{sTmp} offen sc1"), chk([RS + 1]))
    a(f"v_lshlrev_b32 {vr(RS)}, {vr(vT+7)}, {vr(RS)}")
    a(f"v_and_b32 {vr(RS)}, 0xffff0000, {vr(RS)}")
    a(f"s_lshl_b32 s{sTmp}, s{sIdx}, 4")
    a(f"v_lshl_add_u32 {vr(vA1)}, {vr(vA1)}, 2, s{sTmp}")
    a(f"s_mul_i32 s{sTmp}, s{sWave}, {112*16}")
    a(f"s_add_u32 s{sTmp}, s{sTmp}, {AG}")
    a(f"v_lshlrev_b32 {vr(vA0)}, 4, {vr(vLane)}")
    a(f"v_min_u32 {vr(vT+8)}, {47*16}, {vr(vA0)}")
    a(f"s_mov_b32 s{sMask}, -1")
    a(f"s_mov_b32 s{sMask+1}, 0xffff")
    if sentD:
        a(f"s_sleep {sentD}")

    def issD():
        a(f"buffer_load_dwordx4 {vr(vD,4)}, {vr(vA0)}, {srd(srdWS)}, s{sTmp} offen sc1")
        a(f"buffer_load_dwordx4 {vr(vD+4,4)}, {vr(vT+8)}, {srd(srdWS)}, s{sTmp} offen offset:1024 sc1")
    spin("hD", issD, chk([vD + 1, vD + 3, vD + 5, vD + 7]))
    stamp(6)
    a(f"v_cndmask_b32 {vr(vD+4)}, 0, {vr(vD+4)}, {sp(sMask)}")
    a(f"v_cndmask_b32 {vr(vD+6)}, 0, {vr(vD+6)}, {sp(sMask)}")
    for i in range(2):
        for rp in range(2):
            for c in range(8):
                a(f"v_dot2c_f32_bf16 {vr(acc+c)}, {vr(wmap[(2*i+rp, c)])}, {vr(vD+4*i+2*rp)}")
    bd_finish(RS)
    a(f"global_store_dword {vr(vA1)}, {vr(vT+4)}, {sp(sOut)}")
    a(f"s_cmp_lg_u32 s{sIdx}, 0")
    a("s_cbranch_scc1 L_fin")
    a("s_mov_b64 exec, 1")
    a(f"v_mov_b32 {vr(vA0)}, 0")
    a(f"buffer_store_dword {vr(vT+5)}, {vr(vA0)}, {srd(srdWS)}, 0 offen offset:{EPO} sc0 sc1")
    a("s_branch L_fin")

    a.label("L_roleC")
    a(f"v_lshrrev_b32 {vr(vA0)}, 1, {vr(vLane)}")
    a(f"v_lshlrev_b32 {vr(vA0)}, 6, {vr(vA0)}")
    a(f"v_and_b32 {vr(vT)}, 1, {vr(vLane)}")
    a(f"v_lshl_add_u32 {vr(vA0)}, {vr(vT)}, 4, {vr(vA0)}")
    a(f"v_lshrrev_b32 {vr(vA1)}, 2, v0")
    a(f"v_lshlrev_b32 {vr(vA1)}, 6, {vr(vA1)}")
    a(f"v_and_b32 {vr(vT+1)}, 2, {vr(vLane)}")
    a(f"v_lshl_add_u32 {vr(vA1)}, {vr(vT+1)}, 3, {vr(vA1)}")
    a(f"v_lshlrev_b32 {vr(vT)}, 5, {vr(vT)}")
    a(f"v_and_b32 {vr(vT+1)}, 0x18, {vr(vLane)}")
    a(f"v_add_u32 {vr(vT+7)}, {vr(vT)}, {vr(vT+1)}")
    a(f"s_lshl_b32 s{sTmp2}, s{sIdx}, 6")
    a(f"s_add_u32 s{sTmp2}, s{sTmp2}, {AG}")
    if sentC:
        a(f"v_and_b32 {vr(vT)}, 7, {vr(vLane)}")
        a(f"v_lshlrev_b32 {vr(vT+8)}, 11, {vr(vT)}")
        a(f"s_lshl_b32 s{sTmp}, s{sChunk}, 6")
        a(f"s_add_u32 s{sTmp}, s{sTmp}, {OG}")
        spin("sC", lambda: a(f"buffer_load_dword {vr(vD)}, {vr(vT+8)}, {srd(srdWS)}, s{sTmp} offen offset:4 sc1"), chk([vD]))
        a(f"s_sleep {sentC}")
    a(f"s_mov_b32 s{sTmp}, {HG}")

    def issC():
        a(f"buffer_load_dwordx4 {vr(vD,4)}, {vr(vA0)}, {srd(srdWS)}, s{sTmp} offen sc1")
        a(f"buffer_load_dwordx4 {vr(vD+4,4)}, {vr(vA0)}, {srd(srdWS)}, s{sTmp} offen offset:2048 sc1")
        a(f"buffer_load_dwordx4 {vr(vD+8,4)}, {vr(vA1)}, {srd(srdWS)}, s{sTmp} offen sc1")
    spin("hC", issC, chk([vD + 2 * i + 1 for i in range(6)]))
    stamp(6)
    layernorm([vD, vD + 2, vD + 4, vD + 6], [vD + 8, vD + 10], vXF, vX)
    for rp in range(2):
        for m in range(2):
            for c in range(8):
                a(f"v_dot2c_f32_bf16 {vr(acc+8*m+c)}, {vr(wmap[(2*m+rp, c)])}, {vr(vD+8+2*rp)}")
    halve(32, [acc + k for k in range(8)], [acc + 8 + k for k in range(8)])
    halve(16, [acc + k for k in range(4)], [acc + 4 + k for k in range(4)])
    halve_dpp(8, [acc, acc + 1], [acc + 2, acc + 3])
    halve_dpp(4, [acc], [acc + 1])
    dpp_steps("v_add_f32", [acc], ["quad_perm:[2,3,0,1]"])
    cross(acc)
    bf16r(vT, vT)
    a(f"v_mov_b32 {vr(vT+1)}, {vr(vT)}")
    a(f"v_permlane32_swap_b32 {vr(vT)}, {vr(vT+1)}")
    a(f"v_max_f32 {vr(vT)}, 0, {vr(vT)}")
    a(f"v_mul_f32 {vr(vT)}, {vr(vT)}, {vr(vT+1)}")
    a(f"v_mov_b32_dpp {vr(vT+1)}, {vr(vT)} row_ror:12 {DPPF}")
    a(f"v_cvt_pk_bf16_f32 {vr(vT+4)}, {vr(vT)}, {vr(vT+1)}")
    a(f"s_mov_b32 exec_lo, 0x03030303")
    a(f"s_mov_b32 exec_hi, 0")
    a(f"buffer_store_dwordx2 {vr(vT+4,2)}, {vr(vT+7)}, {srd(srdWS)}, s{sTmp2} offen sc1")

    a.label("L_fin")
    if stamps:
        stamp(7)
        a("s_mov_b64 exec, -1")
        a("s_waitcnt lgkmcnt(0)")
        for k in range(8):
            a(f"v_mov_b32 {vr(vD+k)}, s{sT+2*k}")
        a(f"s_getreg_b32 s{sTmp}, hwreg(HW_REG_XCC_ID)")
        a(f"v_mov_b32 {vr(vD+8)}, s{sTmp}")
        a(f"v_mov_b32 {vr(vD+9)}, s{sArr}")
        a(f"v_mov_b32 {vr(vD+10)}, s{sTag}")
        a(f"v_mov_b32 {vr(vD+11)}, {vr(vTk)}")
        a(f"s_lshl_b32 s{sTmp}, s2, 2")
        a(f"s_add_u32 s{sTmp}, s{sTmp}, s{sWave}")
        a(f"s_lshl_b32 s{sTmp}, s{sTmp}, 6")
        a(f"s_add_u32 s{sTmp}, s{sTmp}, {TS}")
        a(f"v_mov_b32 {vr(vA0)}, 0")
        a("s_mov_b64 exec, 1")
        for k in range(3):
            a(f"buffer_store_dwordx4 {vr(vD+4*k,4)}, {vr(vA0)}, {srd(srdWS)}, s{sTmp} offen offset:{16*k}")
    a.label("L_end")
    a("s_endpgm")
    a.raw(f""".section .rodata,"a"
.p2align 6
.amdhsa_kernel {NAME}_kernel
  .amdhsa_next_free_vgpr 512
  .amdhsa_next_free_sgpr 102
  .amdhsa_accum_offset 256
  .amdhsa_group_segment_fixed_size 0
  .amdhsa_kernarg_size 96
  .amdhsa_user_sgpr_count 2
  .amdhsa_user_sgpr_kernarg_segment_ptr 1
  .amdhsa_system_sgpr_workgroup_id_x 1
.end_amdhsa_kernel""")
    return a.text()


if __name__ == "__main__":
    import argparse
    ap = argparse.ArgumentParser()
    ap.add_argument("-o", default=f"cdna_kernels/{NAME}.s")
    ap.add_argument("--stamps", action="store_true")
    args = ap.parse_args()
    open(args.o, "w").write(gen(stamps=args.stamps))
```

```python
import sys, struct
sys.path.insert(0, "work")
from asmlib import Asm

NAME = "sequential_preLN__gqa_block_cached__glu_gated_reglu__decode"

def f32(x):
    return "0x%08x" % struct.unpack("<I", struct.pack("<f", x))[0]

LOG2E = 1.4426950408889634
SCALE = 128 ** -0.5

EPO, CNT, QG, HG, PA, OP, DP, TS = 0x0, 0x1000, 0x4000, 0x8000, 0x10000, 0x110000, 0x190000, 0x200000
WS_BYTES = 0x400000
LR, LCNT, LQ, LH, LO, LML = 0, 1024, 2048, 3072, 4096, 12288
LDS_BYTES = 14336

sX, sKp, sVp, sWq, sWo, sWg, sWu, sWd, sOut, sDbg, sWs = 4, 6, 8, 10, 12, 16, 18, 20, 22, 24, 26
srdK, srdV, srdWS, srdRA, srdRB, srdT = 28, 32, 36, 40, 44, 48
sWave, sHead, sChunk, sRole, sTag, sNB, sU, sTmp = 52, 53, 54, 55, 56, 57, 58, 59
sXc, sY, sSelLo, sSelHi, sCnt, sTmp2, sIdx, sLast = 60, 61, 62, 63, 64, 65, 66, 67
sSkW, sSkI, sHiM, sArr, sTmp3, sL2E, sIsT, sCm = 68, 69, 70, 71, 72, 73, 74, 75
sP = 40
sT = 80

vLane, vKoff, vVoff, vRole, vA0, vA1, vA2 = 1, 2, 3, 4, 5, 6, 7
vQ = 8
vAcc = 12
vN, vL, vM = 20, 21, 22
vTk = 23
vX = 24
vD = 40
vT = 72
vWO = 88
vGU = 152
vWD = 184
vSp = 200
vCntA, vOne, vL4, vFlag = 201, 202, 203, 204
vTB = 205
vTC = 209
vL16 = 211
vWQ = vGU
vXP = 228
vXB = 232
vXF = 236
vPoll = 244


def srd(n):
    return f"s[{n}:{n+3}]"

def sp(n):
    return f"s[{n}:{n+1}]"

def vr(n, k=1):
    return f"v{n}" if k == 1 else f"v[{n}:{n+k-1}]"

def ar(n, k):
    return f"a[{n}:{n+k-1}]"

DPPF = "row_mask:0xf bank_mask:0xf"

def ror(n):
    n %= 16
    return "quad_perm:[0,1,2,3]" if n == 0 else f"row_ror:{n}"


def gen(T=8, S=12, stamps=False, maxpoll=200000, slB=0, slC=0, slD=0, slQ=0, dyn=True, notail=False, noW=False):
    a = Asm()
    a.raw(f"; @launch grid=(256,1,1) block=(256,1,1) lds={LDS_BYTES}")
    a.raw('.amdgcn_target "amdgcn-amd-amdhsa--gfx950"')
    a.raw(".text")
    a.raw(f".globl {NAME}_kernel\n.p2align 8\n.type {NAME}_kernel,@function\n{NAME}_kernel:")
    if not dyn:
        S = 16
    NTICK = (16 - S) * 32

    def stamp(i):
        if stamps:
            a(f"s_memrealtime {sp(sT + 2 * i)}")

    def xrow(op, regs, tmps, which):
        for r, t in zip(regs, tmps):
            a(f"v_mov_b32 {vr(t)}, {vr(r)}")
        for r, t in zip(regs, tmps):
            a(f"v_permlane{which}_swap_b32 {vr(r)}, {vr(t)}")
        for r, t in zip(regs, tmps):
            a(f"{op} {vr(r)}, {vr(r)}, {vr(t)}")

    def dpp_steps(op, regs, steps):
        for st in steps:
            for r in regs:
                a(f"{op}_dpp {vr(r)}, {vr(r)}, {vr(r)} {st} {DPPF}")

    ROW_ALL = ["quad_perm:[1,0,3,2]", "quad_perm:[2,3,0,1]", "row_half_mirror", "row_mirror"]

    def halve(which, lo, hi):
        for x, y in zip(lo, hi):
            a(f"v_permlane{which}_swap_b32 {vr(x)}, {vr(y)}")
        for x, y in zip(lo, hi):
            a(f"v_add_f32 {vr(x)}, {vr(x)}, {vr(y)}")

    def halve_dpp(n, lo, hi):
        m0, m1 = (0x3, 0xc) if n == 8 else (0x5, 0xa)
        for x, y in zip(lo, hi):
            a(f"v_add_f32_dpp {vr(x)}, {vr(x)}, {vr(x)} row_ror:{16-n} row_mask:0xf bank_mask:{m0:#x}")
        for x, y in zip(lo, hi):
            a(f"v_add_f32_dpp {vr(x)}, {vr(y)}, {vr(y)} row_ror:{n} row_mask:0xf bank_mask:{m1:#x}")

    def bf16r(dst, src):
        a(f"v_cvt_pk_bf16_f32 {vr(dst)}, {vr(src)}, {vr(src)}")
        a(f"v_lshlrev_b32 {vr(dst)}, 16, {vr(dst)}")

    def unpack(p, lo, hi):
        a(f"v_lshlrev_b32 {vr(lo)}, 16, {vr(p)}")
        a(f"v_and_b32 {vr(hi)}, 0xffff0000, {vr(p)}")

    def layernorm(packed, own, dst, F, t):
        for k, p in enumerate(packed):
            unpack(p, F + 2 * k, F + 2 * k + 1)
        s1, s2, u1, u2, mb, rd = t, t + 1, t + 2, t + 3, t + 4, t + 5
        a(f"v_add_f32 {vr(s1)}, {vr(F)}, {vr(F + 1)}")
        a(f"v_mul_f32 {vr(s2)}, {vr(F)}, {vr(F)}")
        a(f"v_add_f32 {vr(u1)}, {vr(F + 2)}, {vr(F + 3)}")
        a(f"v_mul_f32 {vr(u2)}, {vr(F + 1)}, {vr(F + 1)}")
        for k in range(2, 8):
            a(f"v_fmac_f32 {vr(s2 if k % 2 == 0 else u2)}, {vr(F + k)}, {vr(F + k)}")
            if k >= 4:
                a(f"v_add_f32 {vr(s1 if k % 2 == 0 else u1)}, {vr(s1 if k % 2 == 0 else u1)}, {vr(F + k)}")
        a(f"v_add_f32 {vr(s1)}, {vr(s1)}, {vr(u1)}")
        a(f"v_add_f32 {vr(s2)}, {vr(s2)}, {vr(u2)}")
        if own is not None:
            for k, p in enumerate(own):
                unpack(p, F + 2 * k, F + 2 * k + 1)
        nv = 2 * len(dst)
        halve(32, [s1], [s2])
        dpp_steps("v_add_f32", [s1], ROW_ALL)
        xrow("v_add_f32", [s1], [u1], 16)
        a(f"v_mul_f32 {vr(s1)}, {f32(1.0/512)}, {vr(s1)}")
        a(f"v_mov_b32 {vr(s2)}, {vr(s1)}")
        a(f"v_permlane32_swap_b32 {vr(s1)}, {vr(s2)}")
        a(f"v_fma_f32 {vr(s2)}, -{vr(s1)}, {vr(s1)}, {vr(s2)}")
        a(f"v_max_f32 {vr(s2)}, 0, {vr(s2)}")
        a(f"v_cvt_pk_bf16_f32 {vr(u1)}, {vr(s1)}, {vr(s2)}")
        a(f"v_and_b32 {vr(s2)}, 0xffff0000, {vr(u1)}")
        a(f"v_add_f32 {vr(s2)}, {f32(1e-5)}, {vr(s2)}")
        a(f"v_lshlrev_b32 {vr(mb)}, 16, {vr(u1)}")
        bf16r(s2, s2)
        a(f"v_sqrt_f32 {vr(s2)}, {vr(s2)}")
        for k in range(nv):
            a(f"v_sub_f32 {vr(F + k)}, {vr(F + k)}, {vr(mb)}")
            if k == 1:
                bf16r(s2, s2)
                a(f"v_rcp_f32 {vr(rd)}, {vr(s2)}")
        for k, p in enumerate(dst):
            a(f"v_cvt_pk_bf16_f32 {vr(p)}, {vr(F + 2 * k)}, {vr(F + 2 * k + 1)}")
        for k, p in enumerate(dst):
            unpack(p, F + 2 * k, F + 2 * k + 1)
        for k in range(nv):
            a(f"v_mul_f32 {vr(F + k)}, {vr(F + k)}, {vr(rd)}")
        for k, p in enumerate(dst):
            a(f"v_cvt_pk_bf16_f32 {vr(p)}, {vr(F + 2 * k)}, {vr(F + 2 * k + 1)}")

    def mk_srd(S_, P, size, add=None, mask=None):
        if add is None:
            a(f"s_mov_b32 s{S_}, s{P}")
            a(f"s_mov_b32 s{S_+1}, s{P+1}")
        else:
            a(f"s_add_u32 s{S_}, s{P}, s{add}")
            a(f"s_addc_u32 s{S_+1}, s{P+1}, 0")
        if mask is None:
            a(f"s_mov_b32 s{S_+2}, {size:#x}")
        else:
            a(f"s_and_b32 s{S_+2}, s{mask}, {size:#x}")
        a(f"s_mov_b32 s{S_+3}, 0x20000")

    a("s_cmp_ge_u32 s2, 256")
    a("s_cbranch_scc1 L_end")
    a("s_load_dwordx16 s[4:19], s[0:1], 0")
    a("s_load_dwordx8 s[20:27], s[0:1], 64")
    stamp(0)
    if stamps:
        for k in range(1, 9):
            a(f"s_mov_b32 s{sT+2*k}, 0")
        a("s_mov_b32 s76, 0")
    a(f"v_lshrrev_b32 v5, 6, v0")
    a(f"v_and_b32 {vr(vLane)}, 63, v0")
    a(f"v_readfirstlane_b32 s{sWave}, v5")
    a(f"s_lshr_b32 s{sHead}, s2, 5")
    a(f"s_and_b32 s{sChunk}, s2, 31")
    a(f"s_and_b32 s{sXc}, s2, 7")
    a(f"s_bfe_u32 s{sY}, s2, 0x20003")
    a(f"s_mov_b32 s{sSelLo}, 0x05040100")
    a(f"s_mov_b32 s{sSelHi}, 0x07060302")
    a(f"s_mov_b32 s{sHiM}, 0xffffff00")
    a(f"s_mov_b32 s{sL2E}, {f32(LOG2E)}")
    a(f"v_lshlrev_b32 {vr(vVoff)}, 4, v0")
    a(f"v_lshrrev_b32 v6, 4, {vr(vLane)}")
    a(f"v_lshlrev_b32 v6, 6, v6")
    a(f"v_bfe_u32 v7, {vr(vLane)}, 2, 2")
    a(f"v_lshlrev_b32 v7, 8, v7")
    a(f"v_and_b32 {vr(vKoff)}, 3, {vr(vLane)}")
    a(f"v_lshlrev_b32 {vr(vKoff)}, 4, {vr(vKoff)}")
    a(f"v_add3_u32 {vr(vKoff)}, {vr(vKoff)}, v6, v7")
    a(f"v_lshlrev_b32 v5, 10, v5")
    a(f"v_add_u32 {vr(vKoff)}, {vr(vKoff)}, v5")
    a(f"v_lshlrev_b32 {vr(vL16)}, 4, {vr(vLane)}")
    a(f"v_lshrrev_b32 {vr(vT)}, 2, v0")
    a(f"v_lshlrev_b32 {vr(vA1)}, 4, {vr(vT)}")
    a(f"s_lshl_b32 s{sTmp}, s{sXc}, 1")
    a(f"s_and_b32 s{sTmp2}, s{sY}, 1")
    a(f"s_add_u32 s{sTmp}, s{sTmp}, s{sTmp2}")
    a(f"s_lshl_b32 s{sTmp}, s{sTmp}, 6")
    a(f"s_lshl_b32 s{sTmp2}, s{sHead}, 10")
    a(f"s_add_u32 s{sCnt}, s{sTmp}, s{sTmp2}")
    a(f"v_lshlrev_b32 {vr(vT)}, 16, {vr(vT)}")
    a(f"v_and_b32 {vr(vT+1)}, 48, {vr(vL16)}")
    a(f"v_add3_u32 {vr(vA2)}, {vr(vT)}, {vr(vT+1)}, s{sCnt}")
    a(f"v_lshrrev_b32 {vr(vT)}, 1, v0")
    a(f"v_mul_u32_u24 {vr(vRole)}, {4*3584}, {vr(vT)}")
    a(f"v_and_b32 {vr(vT+2)}, 16, {vr(vL16)}")
    a(f"s_lshl_b32 s{sTmp}, s{sHead}, 1")
    a(f"s_add_u32 s{sTmp}, s{sTmp}, s{sY}")
    a(f"s_sub_u32 s{sTmp}, s{sTmp}, 1")
    a(f"s_mul_i32 s{sIdx}, s{sXc}, 14")
    a(f"s_add_u32 s{sIdx}, s{sIdx}, s{sTmp}")
    a(f"s_cmp_lt_u32 s{sTmp}, 14")
    a(f"s_cselect_b32 s{sRole}, 1, 3")
    a(f"s_lshl_b32 s{sTmp}, s{sXc}, 3")
    a(f"s_add_u32 s{sTmp}, s{sTmp}, s{sHead}")
    a(f"s_cmp_eq_u32 s{sY}, 0")
    a(f"s_cselect_b32 s{sRole}, 0, s{sRole}")
    a(f"s_cselect_b32 s{sIdx}, s{sTmp}, s{sIdx}")
    a(f"s_cmp_eq_u32 s{sY}, 3")
    a(f"s_cselect_b32 s{sRole}, 2, s{sRole}")
    a(f"s_cselect_b32 s{sIdx}, s{sTmp}, s{sIdx}")
    a(f"s_cmp_eq_u32 s{sRole}, 1")
    a(f"s_cselect_b32 s{sCm}, {0 if noW else -1}, 0")
    a(f"s_lshl_b32 s{sTmp}, s{sIdx}, 5")
    a(f"v_add3_u32 {vr(vRole)}, {vr(vRole)}, {vr(vT+2)}, s{sTmp}")
    a(f"s_and_b32 s{sTmp}, s2, 3")
    a(f"s_cmp_eq_u32 s{sTmp}, s{sWave}")
    a(f"s_cselect_b32 s{sIsT}, 1, 0")
    a(f"s_lshl_b32 s{sTmp}, s{sHead}, 2")
    a(f"s_add_u32 s{sTmp}, s{sTmp}, s{sWave}")
    a(f"s_lshl_b32 s{sTmp}, s{sTmp}, 8")
    a(f"s_add_u32 s{sTmp}, s{sTmp}, {CNT}")
    a(f"v_mov_b32 {vr(vCntA)}, s{sTmp}")
    a(f"v_mov_b32 {vr(vOne)}, 1")
    a(f"v_mov_b32 {vr(vTk)}, 0")
    a(f"v_lshlrev_b32 {vr(vL4)}, 2, v0")
    a(f"s_lshr_b32 s{sTmp3}, s2, 1")
    a(f"s_lshl_b32 s{sTmp3}, s{sTmp3}, 15")
    a(f"s_and_b32 s{sTmp}, s2, 1")
    a(f"s_lshl_b32 s{sTmp}, s{sTmp}, 12")
    a(f"s_add_u32 s{sTmp3}, s{sTmp3}, s{sTmp}")
    a(f"s_lshl_b32 s{sTmp}, s{sHead}, 24")
    a(f"s_lshl_b32 s{sNB}, s{sChunk}, 19")
    a("s_waitcnt lgkmcnt(0)")
    a(f"s_load_dword s{sTag}, {sp(sWs)}, {EPO}")
    mk_srd(srdK, sKp, 0x1000000, sTmp)
    mk_srd(srdV, sVp, 0x1000000, sTmp)
    a(f"s_bitcmp1_b32 s{sRole}, 0")
    a("s_cbranch_scc1 L_gu")
    a(f"s_cmp_lg_u32 s{sChunk}, 0")
    a("s_cbranch_scc1 L_noclr")
    a("s_mov_b64 exec, 1")
    a(f"global_store_dword {vr(vCntA)}, {vr(vTk)}, {sp(sWs)} sc0 sc1")
    a("s_mov_b64 exec, -1")
    a.label("L_noclr")
    a(f"global_load_dwordx4 {vr(vXP,4)}, {vr(vL16)}, {sp(sX)}")
    a(f"global_load_dwordx4 {vr(vXB,4)}, {vr(vA1)}, {sp(sX)}")
    mk_srd(srdRA, sWq, 0x400000)
    a(f"buffer_load_dwordx4 {vr(vWQ,4)}, {vr(vA2)}, {srd(srdRA)}, 0 offen")
    for j in range(1, 8):
        a(f"s_mov_b32 s{sTmp2}, {j*8192}")
        a(f"buffer_load_dwordx4 {vr(vWQ+4*j,4)}, {vr(vA2)}, {srd(srdRA)}, s{sTmp2} offen")
    a("s_branch L_gudone")
    a.label("L_gu")
    mk_srd(srdRA, sWg, 512 * 3584, mask=sCm)
    mk_srd(srdRB, sWu, 512 * 3584, mask=sCm)
    for j in range(4):
        if j:
            a(f"s_mov_b32 s{sTmp}, {j * 3584}")
        for m in range(2):
            a(f"buffer_load_dwordx4 {vr(vGU + 16*m + 4*j, 4)}, {vr(vRole)}, {srd(srdRA if m == 0 else srdRB)}, {'s%d' % sTmp if j else '0'} offen")
    mk_srd(srdRB, sWd, 1792 * 1024, mask=sCm)
    a(f"s_lshl_b32 s{sTmp}, s{sIdx}, 14")
    for j in range(16):
        if j and j % 4 == 0:
            a(f"s_add_u32 s{sTmp}, s{sTmp}, 4096")
        a(f"buffer_load_dword {vr(vWD + j)}, {vr(vL4)}, {srd(srdRB)}, s{sTmp} offen offset:{(j % 4) * 1024} nt")
    a.label("L_gudone")
    mk_srd(srdWS, sWs, WS_BYTES)
    mk_srd(srdT, sWs, 0)

    seq = []
    for u in range(4):
        seq += [("K", u, i) for i in range(8)] + [("A", u, 0)] + [("V", u, i) for i in range(8)]
    gend = [9, 17, 26, 34, 43, 51, 60, 68]

    def ring_load(slot, isK, soff):
        a(f"buffer_load_dwordx4 {ar(4 * slot, 4)}, {vr(vKoff if isK else vVoff)}, {srd(srdK if isK else srdV)}, {soff} offen nt")

    def ticket():
        a(f"v_mov_b32 {vr(vTk)}, 1")
        a("s_mov_b64 exec, 1")
        a(f"buffer_atomic_add {vr(vTk)}, {vr(vCntA)}, {srd(srdT)}, 0 offen sc0 sc1")
        a("s_mov_b64 exec, -1")

    def emit_op(op):
        kind, u, i = op
        if kind == "A":
            ticket()
        else:
            a(f"s_add_u32 s{sTmp}, s{sNB}, {(8 * u + i) * 4096}")
            ring_load(u * 16 + (0 if kind == "K" else 8) + i, kind == "K", f"s{sTmp}")

    NF = gend[1]
    a(f"s_cmp_lg_u32 s{sIsT}, 0")
    a("s_cbranch_scc1 L_wo")
    for op in seq[:NF]:
        emit_op(op)
    a("s_branch L_wodone")
    a.label("L_wo")
    mk_srd(srdRA, sWo, 0 if noW else 0x400000)
    for i in range(4):
        if i:
            a(f"s_add_u32 s{sTmp3}, s{sTmp3}, 8192")
        for c in range(4):
            a(f"buffer_load_dwordx4 {vr(vWO + 16*i + 4*c, 4)}, {vr(vL16)}, {srd(srdRA)}, s{sTmp3} offen offset:{c*1024} nt")
    ticket()
    a.label("L_wodone")
    NY = NF
    a(f"v_mov_b32 {vr(vT)}, 0")
    a(f"v_mov_b32 {vr(vT+1)}, 0")
    a(f"ds_write_b64 {vr(vT)}, {vr(vT,2)} offset:{LCNT}")
    a(f"v_and_b32 {vr(vA1)}, 3, {vr(vLane)}")
    a(f"v_lshlrev_b32 {vr(vA1)}, 5, {vr(vA1)}")
    a(f"v_lshrrev_b32 {vr(vA2)}, 4, {vr(vLane)}")
    a(f"v_lshlrev_b32 {vr(vA2)}, 3, {vr(vA2)}")
    a(f"s_lshl_b32 s{sCnt}, s{sCnt}, 1")
    a(f"s_add_u32 s{sCnt}, s{sCnt}, {QG}")
    a(f"v_add3_u32 {vr(vA1)}, {vr(vA1)}, {vr(vA2)}, s{sCnt}")
    a(f"v_and_b32 {vr(vA0)}, 3, {vr(vLane)}")
    a(f"v_lshlrev_b32 {vr(vA0)}, 9, {vr(vA0)}")
    a(f"v_lshrrev_b32 {vr(vA2)}, 2, {vr(vLane)}")
    a(f"v_lshlrev_b32 {vr(vA2)}, 5, {vr(vA2)}")
    a(f"s_lshl_b32 s{sTmp}, s{sHead}, 11")
    a(f"s_add_u32 s{sTmp}, s{sTmp}, {QG}")
    a(f"v_add3_u32 {vr(vA0)}, {vr(vA0)}, {vr(vA2)}, s{sTmp}")
    a(f"v_lshlrev_b32 {vr(vA2)}, 2, {vr(vLane)}")
    qa = vD
    for k in range(8):
        a(f"v_mov_b32 {vr(qa+k)}, 0")
    for k in range(8):
        a(f"v_mov_b32 {vr(vAcc+k)}, 0")
    for k in range(16):
        a(f"v_mov_b32 {vr(vX+k)}, 0")
    a(f"v_mov_b32 {vr(vM)}, 0xff800000")
    a(f"v_mov_b32 {vr(vL)}, 0")
    a(f"v_mov_b32 {vr(vN)}, 0")
    a(f"v_mov_b32 {vr(vRole)}, 0")
    a(f"s_mov_b32 s{sU}, 0")
    a(f"s_mov_b32 s{sLast}, 0")
    vZ = vRole
    a(f"s_bitcmp1_b32 s{sRole}, 0")
    a("s_cbranch_scc1 L_noq")
    a(f"s_waitcnt vmcnt({8 + NY})")
    layernorm([vXP + k for k in range(4)], [vXB + k for k in range(4)], [vXB + k for k in range(4)], vXF, vT + 8)
    for j in range(4):
        a(f"s_waitcnt vmcnt({NY + 6 - 2*j})")
        A_, B_ = vWQ + 8 * j, vWQ + 8 * j + 4
        for k in range(4):
            a(f"v_perm_b32 {vr(vT+2*k)}, {vr(B_+k)}, {vr(A_+k)}, s{sSelLo}")
            a(f"v_perm_b32 {vr(vT+2*k+1)}, {vr(B_+k)}, {vr(A_+k)}, s{sSelHi}")
        for k in range(8):
            a(f"v_dot2c_f32_bf16 {vr(qa+k)}, {vr(vT+k)}, {vr(vXB+j)}")
    halve(32, [qa + k for k in range(4)], [qa + 4 + k for k in range(4)])
    halve(16, [qa, qa + 1], [qa + 2, qa + 3])
    halve_dpp(4, [qa], [qa + 1])
    dpp_steps("v_add_f32", [qa], ["row_ror:8"])
    a(f"ds_write_b32 {vr(vL4)}, {vr(qa)} offset:{LR}")
    a.label("L_noq")
    a("s_waitcnt lgkmcnt(0)")
    a(f"s_mul_i32 s{sTag}, s{sTag}, 0x9e3779b1")
    a(f"s_add_u32 s{sTag}, s{sTag}, 0x7f4a7c15")
    a("s_barrier")
    a(f"s_cmp_eq_u32 s{sIsT}, 0")
    a("s_cbranch_scc1 L_pre")

    def tagcheck(regs, t):
        a(f"v_xor_b32 {vr(t)}, s{sTag}, {vr(regs[0])}")
        for r in regs[1:]:
            a(f"v_bitop3_b32 {vr(t)}, {vr(t)}, {vr(r)}, s{sTag} bitop3:0xf6")

    def spin(name, body, sleep=0):
        a(f"s_mov_b32 s{sCnt}, {maxpoll}")
        a.label(f"L_{name}")
        body()
        a(f"s_cbranch_vccz L_{name}_ok")
        a("s_mov_b64 exec, vcc")
        if sleep:
            a(f"s_sleep {sleep}")
        a(f"s_sub_u32 s{sCnt}, s{sCnt}, 1")
        a(f"s_cmp_lg_u32 s{sCnt}, 0")
        a(f"s_cbranch_scc1 L_{name}")
        a.label(f"L_{name}_ok")
        a("s_mov_b64 exec, -1")

    def tagbytes():
        a(f"v_mov_b32 {vr(vT)}, s{sTag}")
        for k in range(4):
            a(f"v_bfe_u32 {vr(vTB+k)}, {vr(vT)}, {8*k}, 8")
        a(f"v_and_b32 {vr(vT+1)}, 1, {vr(vLane)}")
        a(f"v_lshlrev_b32 {vr(vT+1)}, 4, {vr(vT+1)}")
        a(f"v_lshrrev_b32 {vr(vT)}, {vr(vT+1)}, {vr(vT)}")
        a(f"v_and_b32 {vr(vTC)}, 0xff, {vr(vT)}")
        a(f"v_bfe_u32 {vr(vTC+1)}, {vr(vT)}, 8, 8")

    a(f"s_bitcmp1_b32 s{sRole}, 0")
    a("s_cbranch_scc1 L_nopub")
    a(f"ds_read2st64_b32 {vr(vT,2)}, {vr(vA2)} offset0:{LR//256} offset1:{LR//256+1}")
    a(f"ds_read2st64_b32 {vr(vT+2,2)}, {vr(vA2)} offset0:{LR//256+2} offset1:{LR//256+3}")
    a(f"v_mov_b32 {vr(vT+5)}, s{sTag}")
    a("s_waitcnt lgkmcnt(0)")
    a(f"v_add_f32 {vr(vT)}, {vr(vT)}, {vr(vT+1)}")
    a(f"v_add_f32 {vr(vT+2)}, {vr(vT+2)}, {vr(vT+3)}")
    a(f"v_add_f32 {vr(vT)}, {vr(vT)}, {vr(vT+2)}")
    a(f"v_mov_b32_dpp {vr(vT+1)}, {vr(vT)} row_ror:12 {DPPF}")
    a(f"v_cvt_pk_bf16_f32 {vr(vT+4)}, {vr(vT)}, {vr(vT+1)}")
    a(f"s_mov_b32 exec_lo, 0x000f000f")
    a(f"s_mov_b32 exec_hi, 0x000f000f")
    a(f"buffer_store_dwordx2 {vr(vT+4,2)}, {vr(vA1)}, {srd(srdWS)}, 0 offen sc1")
    a("s_mov_b64 exec, -1")
    a.label("L_nopub")
    stamp(1)
    for op in seq[:NF]:
        emit_op(op)
    tagbytes()

    def bodyQ():
        r = vPoll
        a(f"buffer_load_dwordx4 {vr(r,4)}, {vr(vA0)}, {srd(srdWS)}, 0 offen sc1")
        a(f"buffer_load_dwordx4 {vr(r+4,4)}, {vr(vA0)}, {srd(srdWS)}, 0 offen offset:16 sc1")
        a("s_waitcnt vmcnt(0)")
        tagcheck([r + 1, r + 3, r + 5, r + 7], vT)
        a(f"v_cmp_ne_u32 vcc, 0, {vr(vT)}")
    spin("hQ", bodyQ, slQ)
    for k in range(4):
        a(f"v_mov_b32 {vr(vQ+k)}, {vr(vPoll+2*k)}")
    a(f"ds_write_b128 {vr(vL16)}, {vr(vQ,4)} offset:{LQ}")
    a(f"ds_write_b32 {vr(vZ)}, {vr(vOne)} offset:{LCNT+4}")
    a(f"s_mov_b32 s{sSkW}, 2")
    a(f"s_mov_b32 s{sSkI}, 0")
    a("s_branch L_qdone")

    a.label("L_pre")
    stamp(1)
    tagbytes()

    def qlook():
        a(f"ds_read_b32 {vr(vFlag)}, {vr(vZ)} offset:{LCNT+4}")
        a(f"ds_read_b128 {vr(vQ,4)}, {vr(vL16)} offset:{LQ}")
        a("s_waitcnt lgkmcnt(0)")
        a(f"v_cmp_ne_u32 vcc, 0, {vr(vFlag)}")

    for n in range(NF, len(seq)):
        a(f"s_waitcnt vmcnt({T-1})")
        emit_op(seq[n])
        if n + 1 in gend:
            I = gend.index(n + 1) + 1
            a(f"s_mov_b32 s{sSkW}, {sum(1 for e in gend if e <= n + 1 - T)}")
            a(f"s_mov_b32 s{sSkI}, {I - 2}")
            if n + 1 < len(seq):
                qlook()
                a("s_cbranch_vccnz L_qdone")
    a(f"s_mov_b32 s{sCnt}, {maxpoll * 8}")
    a.label("L_qspin")
    qlook()
    a("s_cbranch_vccnz L_qdone")
    a("s_sleep 2")
    a(f"s_sub_u32 s{sCnt}, s{sCnt}, 1")
    a(f"s_cmp_lg_u32 s{sCnt}, 0")
    a("s_cbranch_scc1 L_qspin")
    a.label("L_qdone")
    stamp(2)

    Sa, Sb, P = vT, vT + 1, vT + 2
    TT = [[vT + 4, vT + 5], [vT + 6, vT + 7]]
    Plo, Phi = [vT + 8, vT + 10], [vT + 9, vT + 11]
    t0, t1 = vT + 12, vT + 13

    wmap = {}
    def wperm():
        spare = vSp
        prs = []
        for pr in range(8):
            prs += [(("O", pr, 2 * k), vWO + 8 * pr + k, vWO + 8 * pr + 4 + k) for k in range(4)]
        for pr in range(4):
            prs += [(("G", pr, 2 * k), vGU + 8 * pr + k, vGU + 8 * pr + 4 + k) for k in range(4)]
        for pr in range(8):
            prs += [(("D", pr, 0), vWD + 2 * pr, vWD + 2 * pr + 1)]
        for (nm, pr, c), A_, B_ in prs:
            a(f"v_perm_b32 {vr(spare)}, {vr(B_)}, {vr(A_)}, s{sSelLo}")
            a(f"v_perm_b32 {vr(B_)}, {vr(B_)}, {vr(A_)}, s{sSelHi}")
            wmap[(nm, pr, c)] = spare
            wmap[(nm, pr, c + 1)] = B_
            spare = A_

    def gwait(lab, n):
        a(f"s_sub_u32 s{sSkW}, s{sSkW}, 1")
        a(f"s_cbranch_scc0 {lab}")
        a(f"s_mov_b32 s{sSkW}, 0")
        a(f"s_waitcnt vmcnt({n})")
        a.label(lab)

    def issue(uu, isK):
        lab = f"L_sk{uu}{'K' if isK else 'V'}"
        a(f"s_sub_u32 s{sSkI}, s{sSkI}, 1")
        a(f"s_cbranch_scc0 {lab}")
        a(f"s_mov_b32 s{sSkI}, 0")
        for i in range(8):
            slot = ((uu + 1) % 4) * 16 + (0 if isK else 8) + i
            if i == 0:
                ring_load(slot, isK, f"s{sNB}")
            else:
                a(f"s_add_u32 s{sTmp}, s{sNB}, {i * 4096}")
                ring_load(slot, isK, f"s{sTmp}")
        if isK:
            ticket()
        a.label(lab)

    a.label("L_loop")
    for uu in range(4):
        gwait(f"L_gwK{uu}", 8)
        for i in range(8):
            a(f"v_mfma_f32_16x16x32_bf16 {vr(vD+4*i,4)}, {ar((uu*16+i)*4,4)}, {vr(vQ,4)}, 0")
        if stamps:
            a("s_add_u32 s76, s76, 1")
        a(f"s_add_u32 s{sU}, s{sU}, 1")
        a(f"s_add_u32 s{sNB}, s{sNB}, 0x8000")
        a(f"s_cmp_lt_u32 s{sU}, {S}")
        a(f"s_cbranch_scc1 L_st{uu}")
        if dyn:
            a(f"v_readfirstlane_b32 s{sTmp}, {vr(vTk)}")
            a(f"s_and_b32 s{sNB}, s{sTmp}, 31")
            a(f"s_lshl_b32 s{sNB}, s{sNB}, 19")
            a(f"s_lshr_b32 s{sTmp2}, s{sTmp}, 5")
            a(f"s_add_u32 s{sTmp2}, s{sTmp2}, {S}")
            a(f"s_lshl_b32 s{sTmp2}, s{sTmp2}, 15")
            a(f"s_add_u32 s{sNB}, s{sNB}, s{sTmp2}")
            a(f"s_cmp_lt_u32 s{sTmp}, {NTICK}")
            a(f"s_cbranch_scc1 L_st{uu}")
        a(f"s_mov_b32 s{sLast}, 1")
        a(f"s_mov_b32 s{sNB}, 0")
        a(f"s_mov_b32 s{srdK+2}, 0")
        a(f"s_mov_b32 s{srdV+2}, 0")
        a(f"s_mov_b32 s{sU}, 0")
        a.label(f"L_st{uu}")
        if dyn:
            a(f"s_cmp_ge_u32 s{sU}, {S-1}")
            a(f"s_cselect_b32 s{srdT+2}, {WS_BYTES}, 0")
        issue(uu, True)
        for step in range(2):
            for j in range(4):
                for half in range(2):
                    for spn in range(2):
                        s = 2 * spn + step
                        dst = TT[half][spn]
                        src = vD + 4 * (4 * half + j) + s
                        if step == 0:
                            a(f"v_mov_b32_dpp {vr(dst)}, {vr(src)} {ror(4*(j-s))} row_mask:0xf bank_mask:{1<<j:#x}")
                        else:
                            a(f"v_add_f32_dpp {vr(dst)}, {vr(src)}, {vr(dst)} {ror(4*(j-s))} row_mask:0xf bank_mask:{1<<j:#x}")
        a(f"v_add_f32 {vr(Sa)}, {vr(TT[0][0])}, {vr(TT[0][1])}")
        a(f"v_add_f32 {vr(Sb)}, {vr(TT[1][0])}, {vr(TT[1][1])}")
        a(f"v_cvt_pk_bf16_f32 {vr(P)}, {vr(Sa)}, {vr(Sb)}")
        unpack(P, Sa, Sb)
        a(f"v_mul_f32 {vr(Sa)}, {f32(SCALE)}, {vr(Sa)}")
        a(f"v_mul_f32 {vr(Sb)}, {f32(SCALE)}, {vr(Sb)}")
        a(f"v_cvt_pk_bf16_f32 {vr(P)}, {vr(Sa)}, {vr(Sb)}")
        unpack(P, Sa, Sb)
        a(f"v_max_f32 {vr(t0)}, {vr(Sa)}, {vr(Sb)}")
        a(f"v_cmp_gt_f32 vcc, {vr(t0)}, {vr(vM)}")
        a(f"s_cbranch_vccz L_nors{uu}")
        dpp_steps("v_max_f32", [t0], ["row_ror:4", "row_ror:8"])
        xrow("v_max_f32", [t0], [t1], 16)
        xrow("v_max_f32", [t0], [t1], 32)
        a(f"v_max_f32 {vr(t0)}, {vr(t0)}, {vr(vM)}")
        a(f"v_sub_f32 {vr(t1)}, {vr(vM)}, {vr(t0)}")
        a(f"v_mul_f32 {vr(t1)}, {f32(LOG2E)}, {vr(t1)}")
        a(f"v_exp_f32 {vr(t1)}, {vr(t1)}")
        a(f"v_mov_b32 {vr(vM)}, {vr(t0)}")
        a(f"v_mul_f32 {vr(vN)}, {f32(-LOG2E)}, {vr(t0)}")
        a(f"v_mul_f32 {vr(vL)}, {vr(vL)}, {vr(t1)}")
        for k in range(8):
            a(f"v_mul_f32 {vr(vAcc+k)}, {vr(vAcc+k)}, {vr(t1)}")
        a.label(f"L_nors{uu}")
        a(f"v_fma_f32 {vr(Sa)}, {vr(Sa)}, s{sL2E}, {vr(vN)}")
        a(f"v_fma_f32 {vr(Sb)}, {vr(Sb)}, s{sL2E}, {vr(vN)}")
        a(f"v_exp_f32 {vr(Sa)}, {vr(Sa)}")
        a(f"v_exp_f32 {vr(Sb)}, {vr(Sb)}")
        a(f"v_add_f32 {vr(vL)}, {vr(vL)}, {vr(Sa)}")
        a(f"v_cvt_pk_bf16_f32 {vr(P)}, {vr(Sa)}, {vr(Sb)}")
        a(f"v_add_f32 {vr(vL)}, {vr(vL)}, {vr(Sb)}")
        a(f"v_and_b32 {vr(Plo[0])}, 0xffff, {vr(P)}")
        a(f"v_lshlrev_b32 {vr(Phi[0])}, 16, {vr(P)}")
        a(f"v_lshrrev_b32 {vr(Plo[1])}, 16, {vr(P)}")
        a(f"v_and_b32 {vr(Phi[1])}, 0xffff0000, {vr(P)}")
        for i0 in (0, 2, 4, 6):
            for c in range(2):
                for i in (i0, i0 + 1):
                    half, j = i >> 2, i & 3
                    src = (Plo if c == 0 else Phi)[half]
                    for x in range(2):
                        bank = 2 * x + c
                        a(f"v_mov_b32_dpp {vr(vX+2*i+x)}, {vr(src)} {ror(4*(bank-j))} row_mask:0xf bank_mask:{1<<bank:#x}")
        gwait(f"L_gwV{uu}", 9)
        for i in range(8):
            sl = (uu * 16 + 8 + i) * 4
            a(f"v_mfma_f32_16x16x16_bf16 {vr(vAcc,4)}, {ar(sl,2)}, {vr(vX+2*i,2)}, {vr(vAcc,4)}")
            a(f"v_mfma_f32_16x16x16_bf16 {vr(vAcc+4,4)}, {ar(sl+2,2)}, {vr(vX+2*i,2)}, {vr(vAcc+4,4)}")
        a(f"s_cmp_lg_u32 s{sLast}, 0")
        a("s_cbranch_scc1 L_done")
        issue(uu, False)
    a(f"s_cmp_lg_u32 s{sU}, 8")
    a("s_cbranch_scc1 L_loop")
    wperm()
    a.flush()
    a("s_branch L_loop")
    a.label("L_done")
    stamp(3)

    a(f"v_lshlrev_b32 {vr(vA1)}, 3, {vr(vLane)}")
    a(f"s_lshl_b32 s{sTmp}, s{sWave}, 11")
    a(f"v_add_u32 {vr(vA2)}, s{sTmp}, {vr(vL16)}")
    a(f"v_lshlrev_b32 {vr(t0)}, 1, {vr(vL4)}")
    a(f"ds_write_b64 {vr(t0)}, {vr(vN,2)} offset:{LML}")
    a(f"ds_write_b128 {vr(vA2)}, {vr(vAcc,4)} offset:{LO}")
    a(f"ds_write_b128 {vr(vA2)}, {vr(vAcc+4,4)} offset:{LO+1024}")
    a("s_mov_b64 exec, 1")
    a(f"ds_add_rtn_u32 {vr(t1)}, {vr(vZ)}, {vr(vOne)} offset:{LCNT}")
    a("s_mov_b64 exec, -1")
    ML = vX
    OO = vD
    for w in range(4):
        a(f"ds_read_b64 {vr(ML+2*w,2)}, {vr(vA1)} offset:{LML + w*512}")
    for w in range(4):
        for t in range(2):
            a(f"ds_read_b128 {vr(OO+8*w+4*t,4)}, {vr(vL16)} offset:{LO + w*2048 + t*1024}")
    a(f"v_and_b32 {vr(vA0)}, 3, {vr(vLane)}")
    a(f"v_lshlrev_b32 {vr(vA0)}, 10, {vr(vA0)}")
    a(f"v_lshrrev_b32 {vr(vA1)}, 4, {vr(vLane)}")
    a(f"v_lshlrev_b32 {vr(vA1)}, 7, {vr(vA1)}")
    a(f"v_and_b32 {vr(vA2)}, 12, {vr(vLane)}")
    a(f"v_lshlrev_b32 {vr(vA2)}, 2, {vr(vA2)}")
    a(f"v_add3_u32 {vr(vA1)}, {vr(vA0)}, {vr(vA1)}, {vr(vA2)}")
    a(f"s_lshl_b32 s{sTmp}, s2, 12")
    a(f"s_add_u32 s{sTmp}, s{sTmp}, {PA}")
    a("s_waitcnt lgkmcnt(12)")
    a(f"v_readfirstlane_b32 s{sArr}, {vr(t1)}")
    a(f"s_cmp_lg_u32 s{sArr}, 3")
    a("s_cbranch_scc1 L_nopa")
    a("s_waitcnt lgkmcnt(8)")
    R = vT
    a(f"v_min_f32 {vr(R)}, {vr(ML)}, {vr(ML+2)}")
    a(f"v_min3_f32 {vr(R)}, {vr(R)}, {vr(ML+4)}, {vr(ML+6)}")
    for w in range(4):
        a(f"v_sub_f32 {vr(ML+2*w)}, {vr(R)}, {vr(ML+2*w)}")
    for w in range(4):
        a(f"v_exp_f32 {vr(ML+2*w)}, {vr(ML+2*w)}")
    a(f"v_mov_b32 {vr(R+2)}, s{sTag}")
    a(f"v_mul_f32 {vr(R+1)}, {vr(ML)}, {vr(ML+1)}")
    for w in range(1, 4):
        a(f"v_fmac_f32 {vr(R+1)}, {vr(ML+2*w)}, {vr(ML+2*w+1)}")
    a("s_waitcnt lgkmcnt(0)")
    for t in range(2):
        for k in range(4):
            a(f"v_mul_f32 {vr(OO+4*t+k)}, {vr(OO+4*t+k)}, {vr(ML)}")
        if t == 0:
            a(f"v_add_f32_dpp {vr(R+1)}, {vr(R+1)}, {vr(R+1)} row_ror:4 {DPPF}")
        for w in range(1, 4):
            for k in range(4):
                a(f"v_fmac_f32 {vr(OO+4*t+k)}, {vr(OO+8*w+4*t+k)}, {vr(ML+2*w)}")
            if t == 0 and w == 1:
                a(f"v_add_f32_dpp {vr(R+1)}, {vr(R+1)}, {vr(R+1)} row_ror:8 {DPPF}")
            if t == 0 and w == 2:
                a(f"v_mov_b32 {vr(t1)}, {vr(R+1)}")
            if t == 0 and w == 3:
                a(f"v_permlane16_swap_b32 {vr(R+1)}, {vr(t1)}")
            if t == 1 and w == 1:
                a(f"v_permlane32_swap_b32 {vr(R+1)}, {vr(t1)}")
        for k in range(4):
            a(f"v_and_or_b32 {vr(OO+4*t+k)}, {vr(OO+4*t+k)}, s{sHiM}, {vr(vTB+k)}")
        if t == 0:
            a(f"v_add_f32 {vr(R+1)}, {vr(R+1)}, {vr(t1)}")
            a(f"v_mov_b32 {vr(t1)}, {vr(R+1)}")
        else:
            a(f"v_add_f32 {vr(R+1)}, {vr(R+1)}, {vr(t1)}")
        a(f"buffer_store_dwordx4 {vr(OO+4*t,4)}, {vr(vA1)}, {srd(srdWS)}, s{sTmp} offen offset:{64*t} sc1")
    a("s_mov_b64 exec, 15")
    a(f"buffer_store_dwordx3 {vr(R,3)}, {vr(vA0)}, {srd(srdWS)}, s{sTmp} offen offset:512 sc1")
    a("s_mov_b64 exec, -1")
    stamp(4)
    a.label("L_nopa")
    a("s_waitcnt lgkmcnt(0)")
    if notail:
        a("s_branch L_fin")
    acc = vD + 16
    oa = vX + 8
    for k in range(16):
        a(f"v_mov_b32 {vr(acc+k)}, 0")
    for k in range(8):
        a(f"v_mov_b32 {vr(oa+k)}, 0")
    a(f"s_cmp_lg_u32 s{sIsT}, 0")
    a("s_cbranch_scc1 L_tail")
    a(f"s_cmp_eq_u32 s{sRole}, 1")
    a("s_cbranch_scc1 L_Cpre")
    a("s_branch L_fin")

    def bytecheck(regs, t, first=True):
        for k, r in enumerate(regs):
            if first and k == 0:
                a(f"v_xor_b32 {vr(t)}, {vr(r)}, {vr(vTB)}")
            else:
                a(f"v_bitop3_b32 {vr(t)}, {vr(t)}, {vr(r)}, {vr(vTB + k % 4)} bitop3:0xf6")

    a.label("L_tail")
    a(f"v_lshrrev_b32 {vr(vA0)}, 2, {vr(vLane)}")
    a(f"v_lshlrev_b32 {vr(vA0)}, 12, {vr(vA0)}")
    a(f"v_and_b32 {vr(vA1)}, 3, {vr(vLane)}")
    a(f"v_lshlrev_b32 {vr(vA1)}, 4, {vr(vA1)}")
    a(f"s_lshl_b32 s{sTmp}, s{sXc}, 6")
    a(f"v_add3_u32 {vr(vA1)}, {vr(vA1)}, {vr(vA0)}, s{sTmp}")
    a(f"s_lshl_b32 s{sTmp}, s{sHead}, 17")
    a(f"s_lshl_b32 s{sTmp2}, s{sY}, 10")
    a(f"s_add_u32 s{sTmp}, s{sTmp}, s{sTmp2}")
    a(f"s_add_u32 s{sTmp}, s{sTmp}, {PA}")
    a(f"s_add_u32 s{sTmp2}, s{sTmp}, 0x10000")
    a(f"s_lshl_b32 s{sTmp3}, s2, 11")
    a(f"s_add_u32 s{sTmp3}, s{sTmp3}, {OP}")
    G0, G1, L0, L1 = vD, vD + 4, vD + 8, vD + 12

    def bodyA():
        a(f"buffer_load_dwordx3 {vr(L0,3)}, {vr(vA0)}, {srd(srdWS)}, s{sTmp} offen offset:512 sc1")
        a(f"buffer_load_dwordx3 {vr(L1,3)}, {vr(vA0)}, {srd(srdWS)}, s{sTmp2} offen offset:512 sc1")
        a(f"buffer_load_dwordx4 {vr(G0,4)}, {vr(vA1)}, {srd(srdWS)}, s{sTmp} offen sc1")
        a(f"buffer_load_dwordx4 {vr(G1,4)}, {vr(vA1)}, {srd(srdWS)}, s{sTmp2} offen sc1")
        a("s_waitcnt vmcnt(2)")
        tagcheck([L0 + 2, L1 + 2], t0)
        a(f"v_min_f32 {vr(vT)}, {vr(L0)}, {vr(L1)}")
        a("s_waitcnt vmcnt(1)")
        bytecheck([G0 + k for k in range(4)], t1)
        a("s_waitcnt vmcnt(0)")
        bytecheck([G1 + k for k in range(4)], t1, first=False)
        a(f"v_lshl_or_b32 {vr(t0)}, {vr(t1)}, 24, {vr(t0)}")
        a(f"v_cmp_ne_u32 vcc, 0, {vr(t0)}")
    spin("hA", bodyA)
    stamp(8)
    Mx, Ls = vT, vT + 1
    dpp_steps("v_min_f32", [Mx], ["row_ror:4", "row_ror:8"])
    xrow("v_min_f32", [Mx], [t1], 16)
    xrow("v_min_f32", [Mx], [t1], 32)
    a(f"v_sub_f32 {vr(L0)}, {vr(Mx)}, {vr(L0)}")
    a(f"v_sub_f32 {vr(L1)}, {vr(Mx)}, {vr(L1)}")
    a(f"v_exp_f32 {vr(L0)}, {vr(L0)}")
    a(f"v_exp_f32 {vr(L1)}, {vr(L1)}")
    a(f"v_mul_f32 {vr(Ls)}, {vr(L0)}, {vr(L0+1)}")
    a(f"v_fmac_f32 {vr(Ls)}, {vr(L1)}, {vr(L1+1)}")
    for k in range(4):
        a(f"v_mul_f32 {vr(G0+k)}, {vr(G0+k)}, {vr(L0)}")
    a(f"v_add_f32_dpp {vr(Ls)}, {vr(Ls)}, {vr(Ls)} row_ror:4 {DPPF}")
    for k in range(4):
        a(f"v_fmac_f32 {vr(G0+k)}, {vr(G1+k)}, {vr(L1)}")
    a(f"v_add_f32_dpp {vr(Ls)}, {vr(Ls)}, {vr(Ls)} row_ror:8 {DPPF}")
    a(f"v_mov_b32 {vr(t1)}, {vr(Ls)}")
    halve(32, [G0, G0 + 1, Ls], [G0 + 2, G0 + 3, t1])
    a(f"v_mov_b32 {vr(t1)}, {vr(Ls)}")
    halve(16, [G0, Ls], [G0 + 1, t1])
    a(f"v_rcp_f32 {vr(Ls)}, {vr(Ls)}")
    dpp_steps("v_add_f32", [G0], ["row_ror:4", "row_ror:8"])
    a(f"v_mul_f32 {vr(G0)}, {vr(G0)}, {vr(Ls)}")
    a(f"v_mov_b32_dpp {vr(t1)}, {vr(G0)} quad_perm:[1,1,3,3] {DPPF}")
    a(f"v_cvt_pk_bf16_f32 {vr(vT+4)}, {vr(G0)}, {vr(t1)}")
    for pr in range(8):
        a(f"v_readlane_b32 s{sP+pr}, {vr(vT+4)}, {16*(pr>>1) + 2*(pr&1)}")
    for hf in range(2):
        for pr in range(8):
            for c in range(4 * hf, 4 * hf + 4):
                a(f"v_dot2c_f32_bf16 {vr(oa+c)}, s{sP+pr}, {vr(wmap[('O', pr, c)])}")
            if hf == 1 and pr == 0:
                for k in range(4):
                    a(f"v_and_or_b32 {vr(oa+k)}, {vr(oa+k)}, s{sHiM}, {vr(vTB+k)}")
                a(f"buffer_store_dwordx4 {vr(oa,4)}, {vr(vL16)}, {srd(srdWS)}, s{sTmp3} offen sc1")
    for k in range(4):
        a(f"v_and_or_b32 {vr(oa+4+k)}, {vr(oa+4+k)}, s{sHiM}, {vr(vTB+k)}")
    a(f"buffer_store_dwordx4 {vr(oa+4,4)}, {vr(vL16)}, {srd(srdWS)}, s{sTmp3} offen offset:1024 sc1")
    stamp(5)

    a(f"s_cmp_eq_u32 s{sRole}, 3")
    a("s_cbranch_scc1 L_fin")
    a(f"s_cmp_eq_u32 s{sRole}, 1")
    a("s_cbranch_scc1 L_roleC")
    a(f"v_mov_b32 {vr(vT+5)}, s{sTag}")
    a(f"v_and_b32 {vr(vT+8)}, 1, {vr(vLane)}")
    a(f"v_lshrrev_b32 {vr(vT+9)}, 5, {vr(vLane)}")
    a(f"v_lshrrev_b32 {vr(vT+10)}, 1, {vr(vLane)}")
    a(f"v_and_b32 {vr(vT+7)}, 4, {vr(vLane)}")
    a(f"v_lshlrev_b32 {vr(vT+7)}, 2, {vr(vT+7)}")
    a(f"v_sub_u32 {vr(vT+7)}, 16, {vr(vT+7)}")
    a(f"v_lshlrev_b32 {vr(vT+11)}, 4, {vr(vT+8)}")
    a(f"s_cmp_eq_u32 s{sRole}, 2")
    a("s_cbranch_scc1 L_roleD")

    def reduce_body(n, soffs):
        def f():
            for i in range(n):
                a(f"buffer_load_dwordx4 {vr(vD+4*i,4)}, {vr(vA0)}, {srd(srdWS)}, s{soffs[i>>1]} offen offset:{(i&1)*2048} sc1")
            for i in range(n):
                a(f"s_waitcnt vmcnt({n-1-i})")
                bytecheck([vD + 4 * i + k for k in range(4)], t0, first=(i == 0))
                if i == 1:
                    for k in (0, 2):
                        a(f"v_pk_add_f32 {vr(vX+4+k,2)}, {vr(vD+k,2)}, {vr(vD+4+k,2)}")
                elif i > 1:
                    for k in (0, 2):
                        a(f"v_pk_add_f32 {vr(vX+4+k,2)}, {vr(vX+4+k,2)}, {vr(vD+4*i+k,2)}")
            a(f"v_cmp_ne_u32_sdwa vcc, {vr(t0)}, {vr(vZ)} src0_sel:BYTE_0 src1_sel:DWORD")
        return f

    def bd_finish(res):
        r = vX + 4
        halve(32, [r, r + 1], [r + 2, r + 3])
        halve_dpp(4, [r], [r + 1])
        dpp_steps("v_add_f32", [r], ["row_ror:8", "quad_perm:[2,3,0,1]"])
        xrow("v_add_f32", [r], [r + 1], 16)
        bf16r(vT, r)
        a(f"v_add_f32 {vr(vT)}, {vr(vT)}, {vr(res)}")
        a(f"v_mov_b32_dpp {vr(vT+1)}, {vr(vT)} row_ror:12 {DPPF}")
        a(f"v_cvt_pk_bf16_f32 {vr(vT+4)}, {vr(vT)}, {vr(vT+1)}")
        a(f"s_mov_b32 exec_lo, 3")
        a(f"s_mov_b32 exec_hi, 3")

    RS = vX
    a(f"s_and_b32 s{sTmp}, s{sIdx}, 31")
    a(f"s_lshl_b32 s{sTmp}, s{sTmp}, 5")
    a(f"s_lshr_b32 s{sTmp2}, s{sIdx}, 5")
    a(f"s_lshl_b32 s{sTmp3}, s{sTmp2}, 3")
    a(f"s_add_u32 s{sTmp3}, s{sTmp3}, s{sTmp}")
    a(f"v_lshl_add_u32 {vr(vA0)}, {vr(vT+9)}, 2, {vr(vT+11)}")
    a(f"v_add_u32 {vr(vA0)}, s{sTmp3}, {vr(vA0)}")
    a(f"global_load_dword {vr(RS)}, {vr(vA0)}, {sp(sX)}")
    a(f"s_lshl_b32 s{sTmp2}, s{sTmp2}, 10")
    a(f"s_add_u32 s{sTmp}, s{sTmp}, s{sTmp2}")
    for k in range(4):
        a(f"s_add_u32 s{sP+k}, s{sTmp}, {OP + k*4096}")
    a(f"v_lshl_add_u32 {vr(vA0)}, {vr(vT+10)}, 14, {vr(vT+11)}")
    a(f"v_lshl_add_u32 {vr(vA1)}, {vr(vT+9)}, 3, {vr(vT+11)}")
    a(f"s_lshl_b32 s{sTmp2}, s{sIdx}, 6")
    a(f"s_add_u32 s{sTmp2}, s{sTmp2}, {HG}")
    if slB:
        a(f"s_sleep {slB}")
    spin("hB", reduce_body(8, [sP + k for k in range(4)]))
    stamp(6)
    a(f"v_lshlrev_b32 {vr(RS)}, {vr(vT+7)}, {vr(RS)}")
    a(f"v_and_b32 {vr(RS)}, 0xffff0000, {vr(RS)}")
    bd_finish(RS)
    a(f"buffer_store_dwordx2 {vr(vT+4,2)}, {vr(vA1)}, {srd(srdWS)}, s{sTmp2} offen sc1")
    a("s_branch L_fin")

    a.label("L_roleD")
    a(f"v_lshlrev_b32 {vr(vA0)}, 11, {vr(vT+8)}")
    a(f"v_lshl_add_u32 {vr(vA0)}, {vr(vT+9)}, 3, {vr(vA0)}")
    a(f"s_lshr_b32 s{sTmp}, s{sIdx}, 1")
    a(f"s_lshl_b32 s{sTmp}, s{sTmp}, 6")
    a(f"s_and_b32 s{sTmp2}, s{sIdx}, 1")
    a(f"s_lshl_b32 s{sTmp2}, s{sTmp2}, 4")
    a(f"s_add_u32 s{sTmp}, s{sTmp}, s{sTmp2}")
    a(f"s_add_u32 s{sTmp}, s{sTmp}, {HG}")
    for k in range(4):
        a(f"v_mov_b32 {vr(vX+4+k)}, 0")

    def bodyD1():
        a(f"buffer_load_dwordx2 {vr(RS,2)}, {vr(vA0)}, {srd(srdWS)}, s{sTmp} offen sc1")
        a("s_waitcnt vmcnt(0)")
        a(f"v_cmp_ne_u32 vcc, s{sTag}, {vr(RS+1)}")
    spin("hD1", bodyD1, 4)
    a(f"v_lshlrev_b32 {vr(RS)}, {vr(vT+7)}, {vr(RS)}")
    a(f"v_and_b32 {vr(RS)}, 0xffff0000, {vr(RS)}")
    a(f"s_lshl_b32 s{sTmp}, s{sIdx}, 4")
    a(f"v_lshlrev_b32 {vr(vA1)}, 3, {vr(vT+8)}")
    a(f"v_lshl_add_u32 {vr(vA1)}, {vr(vT+9)}, 2, {vr(vA1)}")
    a(f"v_add_u32 {vr(vA1)}, s{sTmp}, {vr(vA1)}")
    a(f"s_lshl_b32 s{sTmp}, s{sIdx}, 5")
    for k in range(2):
        a(f"s_add_u32 s{sP+k}, s{sTmp}, {DP + k*4096}")
    a(f"v_lshl_add_u32 {vr(vA0)}, {vr(vT+10)}, 13, {vr(vT+11)}")
    if slD:
        a(f"s_sleep {slD}")
    a("s_mov_b32 exec_hi, 0x00ffffff")
    spin("hD", reduce_body(4, [sP, sP + 1]))
    stamp(6)
    bd_finish(RS)
    a(f"global_store_dword {vr(vA1)}, {vr(vT+4)}, {sp(sOut)}")
    a(f"s_cmp_lg_u32 s{sIdx}, 0")
    a("s_cbranch_scc1 L_fin")
    a("s_mov_b64 exec, 1")
    a(f"buffer_store_dword {vr(vT+5)}, {vr(vZ)}, {srd(srdWS)}, 0 offen offset:{EPO} sc0 sc1")
    a("s_branch L_fin")

    a.label("L_roleC")
    a(f"v_lshrrev_b32 {vr(vA0)}, 1, {vr(vLane)}")
    a(f"v_lshlrev_b32 {vr(vA0)}, 6, {vr(vA0)}")
    a(f"v_and_b32 {vr(vT)}, 1, {vr(vLane)}")
    a(f"v_lshl_add_u32 {vr(vA0)}, {vr(vT)}, 4, {vr(vA0)}")
    a(f"s_mov_b32 s{sTmp}, {HG}")
    a(f"v_mov_b32 {vr(oa)}, 0")
    a(f"v_mov_b32 {vr(oa+1)}, 0")
    if slC:
        a(f"s_sleep {slC}")

    def bodyC():
        a(f"buffer_load_dwordx4 {vr(vD,4)}, {vr(vA0)}, {srd(srdWS)}, s{sTmp} offen sc1")
        a(f"buffer_load_dwordx4 {vr(vD+4,4)}, {vr(vA0)}, {srd(srdWS)}, s{sTmp} offen offset:2048 sc1")
        a("s_waitcnt vmcnt(0)")
        tagcheck([vD + 1, vD + 3, vD + 5, vD + 7], t0)
        a(f"v_cmp_ne_u32 vcc, 0, {vr(t0)}")
    spin("hC", bodyC)
    stamp(6)
    layernorm([vD, vD + 2, vD + 4, vD + 6], None, [vD + 8 + k for k in range(4)], vXF, vX)
    a(f"ds_write_b128 {vr(vL16)}, {vr(vD+8,4)} offset:{LH}")
    a.label("L_Cpre")
    a(f"v_lshrrev_b32 {vr(vA0)}, 1, v0")
    a(f"v_lshlrev_b32 {vr(vA0)}, 3, {vr(vA0)}")
    a(f"v_lshlrev_b32 {vr(vA2)}, 2, {vr(vLane)}")
    a(f"v_lshlrev_b32 {vr(vA1)}, 1, {vr(vL4)}")
    a(f"s_lshl_b32 s{sTmp2}, s{sIdx}, 11")
    a(f"s_add_u32 s{sTmp2}, s{sTmp2}, {DP}")
    a("s_waitcnt lgkmcnt(0)")
    a("s_barrier")
    a(f"ds_read_b64 {vr(vD,2)}, {vr(vA0)} offset:{LH}")
    a("s_waitcnt lgkmcnt(0)")
    for rp in range(2):
        for m in range(2):
            for c in range(8):
                a(f"v_dot2c_f32_bf16 {vr(acc+8*m+c)}, {vr(wmap[('G', 2*m+rp, c)])}, {vr(vD+rp)}")
    halve(32, [acc + k for k in range(8)], [acc + 8 + k for k in range(8)])
    halve(16, [acc + k for k in range(4)], [acc + 4 + k for k in range(4)])
    halve_dpp(8, [acc, acc + 1], [acc + 2, acc + 3])
    halve_dpp(4, [acc], [acc + 1])
    dpp_steps("v_add_f32", [acc], ["quad_perm:[2,3,0,1]"])
    a(f"ds_write_b32 {vr(vL4)}, {vr(acc)} offset:{LR}")
    a("s_waitcnt lgkmcnt(0)")
    a("s_barrier")
    a(f"ds_read2st64_b32 {vr(vT,2)}, {vr(vA2)} offset0:{LR//256} offset1:{LR//256+1}")
    a(f"ds_read2st64_b32 {vr(vT+2,2)}, {vr(vA2)} offset0:{LR//256+2} offset1:{LR//256+3}")
    a("s_waitcnt lgkmcnt(0)")
    a(f"v_add_f32 {vr(vT)}, {vr(vT)}, {vr(vT+1)}")
    a(f"v_add_f32 {vr(vT+2)}, {vr(vT+2)}, {vr(vT+3)}")
    a(f"v_add_f32 {vr(vT)}, {vr(vT)}, {vr(vT+2)}")
    bf16r(vT, vT)
    a(f"v_mov_b32 {vr(vT+1)}, {vr(vT)}")
    a(f"v_permlane32_swap_b32 {vr(vT)}, {vr(vT+1)}")
    a(f"v_max_f32 {vr(vT)}, 0, {vr(vT)}")
    a(f"v_mul_f32 {vr(vT)}, {vr(vT)}, {vr(vT+1)}")
    a(f"v_mov_b32_dpp {vr(vT+1)}, {vr(vT)} row_ror:12 {DPPF}")
    a(f"v_cvt_pk_bf16_f32 {vr(vT+4)}, {vr(vT)}, {vr(vT+1)}")
    for pr in range(8):
        a(f"v_readlane_b32 s{sP+pr}, {vr(vT+4)}, {(pr>>2) + 8*(pr&1) + 16*((pr>>1)&1)}")
    for pr in range(8):
        for c in range(2):
            a(f"v_dot2c_f32_bf16 {vr(oa+c)}, s{sP+pr}, {vr(wmap[('D', pr, c)])}")
    for c in range(2):
        a(f"v_and_or_b32 {vr(oa+c)}, {vr(oa+c)}, s{sHiM}, {vr(vTC+c)}")
    a(f"buffer_store_dwordx2 {vr(oa,2)}, {vr(vA1)}, {srd(srdWS)}, s{sTmp2} offen sc1")

    a.label("L_fin")
    if stamps:
        stamp(7)
        a("s_mov_b64 exec, -1")
        a("s_waitcnt lgkmcnt(0)")
        for k in range(8):
            a(f"v_mov_b32 {vr(vD+k)}, s{sT+2*k}")
        a(f"s_getreg_b32 s{sTmp}, hwreg(HW_REG_XCC_ID)")
        a(f"v_mov_b32 {vr(vD+8)}, s{sTmp}")
        a(f"v_mov_b32 {vr(vD+9)}, s{sArr}")
        a(f"v_mov_b32 {vr(vD+10)}, s76")
        a(f"v_mov_b32 {vr(vD+11)}, s{sT+16}")
        a(f"s_lshl_b32 s{sTmp}, s2, 2")
        a(f"s_add_u32 s{sTmp}, s{sTmp}, s{sWave}")
        a(f"s_lshl_b32 s{sTmp}, s{sTmp}, 6")
        a(f"s_add_u32 s{sTmp}, s{sTmp}, {TS}")
        a("s_mov_b64 exec, 1")
        for k in range(3):
            a(f"buffer_store_dwordx4 {vr(vD+4*k,4)}, {vr(vZ)}, {srd(srdWS)}, s{sTmp} offen offset:{16*k}")
    a.label("L_end")
    a("s_endpgm")
    a.raw(f""".section .rodata,"a"
.p2align 6
.amdhsa_kernel {NAME}_kernel
  .amdhsa_next_free_vgpr 512
  .amdhsa_next_free_sgpr 102
  .amdhsa_accum_offset 256
  .amdhsa_group_segment_fixed_size 0
  .amdhsa_kernarg_size 96
  .amdhsa_user_sgpr_count 2
  .amdhsa_user_sgpr_kernarg_segment_ptr 1
  .amdhsa_system_sgpr_workgroup_id_x 1
.end_amdhsa_kernel""")
    return a.text()


if __name__ == "__main__":
    import argparse
    ap = argparse.ArgumentParser()
    ap.add_argument("-o", default=f"cdna_kernels/{NAME}.s")
    ap.add_argument("--stamps", action="store_true")
    args = ap.parse_args()
    open(args.o, "w").write(gen(stamps=args.stamps))
```

```python
import sys, struct
sys.path.insert(0, "work")
from asmlib import Asm

NAME = "sequential_preLN__gqa_block_cached__glu_gated_reglu__decode"

def f32(x):
    return "0x%08x" % struct.unpack("<I", struct.pack("<f", x))[0]

LOG2E = 1.4426950408889634
SCALE = 128 ** -0.5

EPO, CNT, QG, HG, PA, OP, DP, TS = 0x0, 0x1000, 0x4000, 0x8000, 0x10000, 0x110000, 0x190000, 0x200000
WS_BYTES = 0x400000
LR, LCNT, LQ, LH, LO, LML = 0, 1024, 2048, 3072, 4096, 12288
LDS_BYTES = 14336

sX, sKp, sVp, sWq, sWo, sWg, sWu, sWd, sOut, sDbg, sWs = 4, 6, 8, 10, 12, 16, 18, 20, 22, 24, 26
srdK, srdV, srdWS, srdRA, srdRB, srdT = 28, 32, 36, 40, 44, 48
sWave, sHead, sChunk, sRole, sTag, sNB, sU, sTmp = 52, 53, 54, 55, 56, 57, 58, 59
sXc, sY, sSelLo, sSelHi, sCnt, sTmp2, sIdx, sLast = 60, 61, 62, 63, 64, 65, 66, 67
sSkW, sSkI, sHiM, sArr, sTmp3, sL2E, sIsT, sCm = 68, 69, 70, 71, 72, 73, 74, 75
sVa, sIsA, sMaxU = 77, 78, 79
sP = 40
sT = 80

vLane, vKoff, vVoff, vRole, vA0, vA1, vA2 = 1, 2, 3, 4, 5, 6, 7
vQ = 8
vAcc = 12
vN, vL, vM = 20, 21, 22
vTk = 23
vX = 24
vD = 40
vT = 72
vWO = 88
vGU = 152
vWD = 184
vSp = 200
vCntA, vOne, vL4, vFlag = 201, 202, 203, 204
vTB = 205
vTC = 209
vL16 = 211
vWQ = vGU
vXP = 228
vXB = 232
vXF = 236
vPoll = 244


def srd(n):
    return f"s[{n}:{n+3}]"

def sp(n):
    return f"s[{n}:{n+1}]"

def vr(n, k=1):
    return f"v{n}" if k == 1 else f"v[{n}:{n+k-1}]"

def ar(n, k):
    return f"a[{n}:{n+k-1}]"

DPPF = "row_mask:0xf bank_mask:0xf"

def ror(n):
    n %= 16
    return "quad_perm:[0,1,2,3]" if n == 0 else f"row_ror:{n}"


def gen(T=8, S=12, stamps=False, maxpoll=200000, slB=0, slC=0, slD=0, slQ=0, dyn=True, notail=False, noW=False, maxuC=61, diag=False):
    a = Asm()
    a.raw(f"; @launch grid=(256,1,1) block=(256,1,1) lds={LDS_BYTES}")
    a.raw('.amdgcn_target "amdgcn-amd-amdhsa--gfx950"')
    a.raw(".text")
    a.raw(f".globl {NAME}_kernel\n.p2align 8\n.type {NAME}_kernel,@function\n{NAME}_kernel:")
    if not dyn:
        S = 16
    NTICK = (16 - S) * 32

    def dstamp(i):
        if stamps and diag:
            a(f"s_memrealtime {sp(sT + 2 * i)}")

    def stamp(i):
        if stamps and not (diag and i in (4, 5, 6, 8)):
            a(f"s_memrealtime {sp(sT + 2 * i)}")

    def xrow(op, regs, tmps, which):
        for r, t in zip(regs, tmps):
            a(f"v_mov_b32 {vr(t)}, {vr(r)}")
        for r, t in zip(regs, tmps):
            a(f"v_permlane{which}_swap_b32 {vr(r)}, {vr(t)}")
        for r, t in zip(regs, tmps):
            a(f"{op} {vr(r)}, {vr(r)}, {vr(t)}")

    def dpp_steps(op, regs, steps):
        for st in steps:
            for r in regs:
                a(f"{op}_dpp {vr(r)}, {vr(r)}, {vr(r)} {st} {DPPF}")

    ROW_ALL = ["quad_perm:[1,0,3,2]", "quad_perm:[2,3,0,1]", "row_half_mirror", "row_mirror"]

    def halve(which, lo, hi):
        for x, y in zip(lo, hi):
            a(f"v_permlane{which}_swap_b32 {vr(x)}, {vr(y)}")
        for x, y in zip(lo, hi):
            a(f"v_add_f32 {vr(x)}, {vr(x)}, {vr(y)}")

    def halve_dpp(n, lo, hi):
        m0, m1 = (0x3, 0xc) if n == 8 else (0x5, 0xa)
        for x, y in zip(lo, hi):
            a(f"v_add_f32_dpp {vr(x)}, {vr(x)}, {vr(x)} row_ror:{16-n} row_mask:0xf bank_mask:{m0:#x}")
        for x, y in zip(lo, hi):
            a(f"v_add_f32_dpp {vr(x)}, {vr(y)}, {vr(y)} row_ror:{n} row_mask:0xf bank_mask:{m1:#x}")

    def bf16r(dst, src):
        a(f"v_cvt_pk_bf16_f32 {vr(dst)}, {vr(src)}, {vr(src)}")
        a(f"v_lshlrev_b32 {vr(dst)}, 16, {vr(dst)}")

    def unpack(p, lo, hi):
        a(f"v_lshlrev_b32 {vr(lo)}, 16, {vr(p)}")
        a(f"v_and_b32 {vr(hi)}, 0xffff0000, {vr(p)}")

    def layernorm(packed, own, dst, F, t):
        for k, p in enumerate(packed):
            unpack(p, F + 2 * k, F + 2 * k + 1)
        s1, s2, u1, u2, mb, rd = t, t + 1, t + 2, t + 3, t + 4, t + 5
        a(f"v_add_f32 {vr(s1)}, {vr(F)}, {vr(F + 1)}")
        a(f"v_mul_f32 {vr(s2)}, {vr(F)}, {vr(F)}")
        a(f"v_add_f32 {vr(u1)}, {vr(F + 2)}, {vr(F + 3)}")
        a(f"v_mul_f32 {vr(u2)}, {vr(F + 1)}, {vr(F + 1)}")
        for k in range(2, 8):
            a(f"v_fmac_f32 {vr(s2 if k % 2 == 0 else u2)}, {vr(F + k)}, {vr(F + k)}")
            if k >= 4:
                a(f"v_add_f32 {vr(s1 if k % 2 == 0 else u1)}, {vr(s1 if k % 2 == 0 else u1)}, {vr(F + k)}")
        a(f"v_add_f32 {vr(s1)}, {vr(s1)}, {vr(u1)}")
        a(f"v_add_f32 {vr(s2)}, {vr(s2)}, {vr(u2)}")
        if own is not None:
            for k, p in enumerate(own):
                unpack(p, F + 2 * k, F + 2 * k + 1)
        nv = 2 * len(dst)
        halve(32, [s1], [s2])
        dpp_steps("v_add_f32", [s1], ROW_ALL)
        xrow("v_add_f32", [s1], [u1], 16)
        a(f"v_mul_f32 {vr(s1)}, {f32(1.0/512)}, {vr(s1)}")
        a(f"v_mov_b32 {vr(s2)}, {vr(s1)}")
        a(f"v_permlane32_swap_b32 {vr(s1)}, {vr(s2)}")
        a(f"v_fma_f32 {vr(s2)}, -{vr(s1)}, {vr(s1)}, {vr(s2)}")
        a(f"v_max_f32 {vr(s2)}, 0, {vr(s2)}")
        a(f"v_cvt_pk_bf16_f32 {vr(u1)}, {vr(s1)}, {vr(s2)}")
        a(f"v_and_b32 {vr(s2)}, 0xffff0000, {vr(u1)}")
        a(f"v_add_f32 {vr(s2)}, {f32(1e-5)}, {vr(s2)}")
        a(f"v_lshlrev_b32 {vr(mb)}, 16, {vr(u1)}")
        bf16r(s2, s2)
        a(f"v_sqrt_f32 {vr(s2)}, {vr(s2)}")
        for k in range(nv):
            a(f"v_sub_f32 {vr(F + k)}, {vr(F + k)}, {vr(mb)}")
            if k == 1:
                bf16r(s2, s2)
                a(f"v_rcp_f32 {vr(rd)}, {vr(s2)}")
        for k, p in enumerate(dst):
            a(f"v_cvt_pk_bf16_f32 {vr(p)}, {vr(F + 2 * k)}, {vr(F + 2 * k + 1)}")
        for k, p in enumerate(dst):
            unpack(p, F + 2 * k, F + 2 * k + 1)
        for k in range(nv):
            a(f"v_mul_f32 {vr(F + k)}, {vr(F + k)}, {vr(rd)}")
        for k, p in enumerate(dst):
            a(f"v_cvt_pk_bf16_f32 {vr(p)}, {vr(F + 2 * k)}, {vr(F + 2 * k + 1)}")

    def mk_srd(S_, P, size, add=None, mask=None):
        if add is None:
            a(f"s_mov_b32 s{S_}, s{P}")
            a(f"s_mov_b32 s{S_+1}, s{P+1}")
        else:
            a(f"s_add_u32 s{S_}, s{P}, s{add}")
            a(f"s_addc_u32 s{S_+1}, s{P+1}, 0")
        if mask is None:
            a(f"s_mov_b32 s{S_+2}, {size:#x}")
        else:
            a(f"s_and_b32 s{S_+2}, s{mask}, {size:#x}")
        a(f"s_mov_b32 s{S_+3}, 0x20000")

    a("s_cmp_ge_u32 s2, 256")
    a("s_cbranch_scc1 L_end")
    a("s_load_dwordx16 s[4:19], s[0:1], 0")
    a("s_load_dwordx8 s[20:27], s[0:1], 64")
    stamp(0)
    if stamps:
        for k in range(1, 9):
            a(f"s_mov_b32 s{sT+2*k}, 0")
        a("s_mov_b32 s76, 0")
    a(f"v_lshrrev_b32 v5, 6, v0")
    a(f"v_and_b32 {vr(vLane)}, 63, v0")
    a(f"v_readfirstlane_b32 s{sWave}, v5")
    a(f"s_lshr_b32 s{sHead}, s2, 5")
    a(f"s_and_b32 s{sChunk}, s2, 31")
    a(f"s_and_b32 s{sXc}, s2, 7")
    a(f"s_bfe_u32 s{sY}, s2, 0x20003")
    a(f"s_mov_b32 s{sSelLo}, 0x05040100")
    a(f"s_mov_b32 s{sSelHi}, 0x07060302")
    a(f"s_mov_b32 s{sHiM}, 0xffffff00")
    a(f"s_mov_b32 s{sL2E}, {f32(LOG2E)}")
    a(f"v_lshlrev_b32 {vr(vVoff)}, 4, v0")
    a(f"v_lshrrev_b32 v6, 4, {vr(vLane)}")
    a(f"v_lshlrev_b32 v6, 6, v6")
    a(f"v_bfe_u32 v7, {vr(vLane)}, 2, 2")
    a(f"v_lshlrev_b32 v7, 8, v7")
    a(f"v_and_b32 {vr(vKoff)}, 3, {vr(vLane)}")
    a(f"v_lshlrev_b32 {vr(vKoff)}, 4, {vr(vKoff)}")
    a(f"v_add3_u32 {vr(vKoff)}, {vr(vKoff)}, v6, v7")
    a(f"v_lshlrev_b32 v5, 10, v5")
    a(f"v_add_u32 {vr(vKoff)}, {vr(vKoff)}, v5")
    a(f"v_lshlrev_b32 {vr(vL16)}, 4, {vr(vLane)}")
    a(f"v_lshrrev_b32 {vr(vT)}, 2, v0")
    a(f"v_lshlrev_b32 {vr(vA1)}, 4, {vr(vT)}")
    a(f"s_lshl_b32 s{sTmp}, s{sXc}, 1")
    a(f"s_and_b32 s{sTmp2}, s{sY}, 1")
    a(f"s_add_u32 s{sTmp}, s{sTmp}, s{sTmp2}")
    a(f"s_lshl_b32 s{sTmp}, s{sTmp}, 6")
    a(f"s_lshl_b32 s{sTmp2}, s{sHead}, 10")
    a(f"s_add_u32 s{sCnt}, s{sTmp}, s{sTmp2}")
    a(f"v_lshlrev_b32 {vr(vT)}, 16, {vr(vT)}")
    a(f"v_and_b32 {vr(vT+1)}, 48, {vr(vL16)}")
    a(f"v_add3_u32 {vr(vA2)}, {vr(vT)}, {vr(vT+1)}, s{sCnt}")
    a(f"s_lshl_b32 s{sTmp}, s{sHead}, 1")
    a(f"s_add_u32 s{sTmp}, s{sTmp}, s{sY}")
    a(f"s_sub_u32 s{sTmp}, s{sTmp}, 1")
    a(f"s_mul_i32 s{sIdx}, s{sXc}, 14")
    a(f"s_add_u32 s{sIdx}, s{sIdx}, s{sTmp}")
    a(f"s_cmp_lt_u32 s{sTmp}, 14")
    a(f"s_cselect_b32 s{sRole}, 1, 3")
    a(f"s_lshl_b32 s{sTmp}, s{sXc}, 3")
    a(f"s_add_u32 s{sTmp}, s{sTmp}, s{sHead}")
    a(f"s_cmp_eq_u32 s{sY}, 0")
    a(f"s_cselect_b32 s{sRole}, 0, s{sRole}")
    a(f"s_cselect_b32 s{sIdx}, s{sTmp}, s{sIdx}")
    a(f"s_cmp_eq_u32 s{sY}, 3")
    a(f"s_cselect_b32 s{sRole}, 2, s{sRole}")
    a(f"s_cselect_b32 s{sIdx}, s{sTmp}, s{sIdx}")
    a(f"s_sub_u32 s{sTmp}, s{sWave}, s2")
    a(f"s_and_b32 s{sTmp}, s{sTmp}, 3")
    a(f"s_cmp_eq_u32 s{sTmp}, 0")
    a(f"s_cselect_b32 s{sIsT}, 1, 0")
    a(f"s_or_b32 s{sTmp2}, s{sTmp}, s{sRole}")
    a(f"s_andn2_b32 s{sIsA}, 1, s{sTmp2}")
    a(f"s_and_b32 s{sVa}, s2, 0xe7")
    a(f"s_lshl_b32 s{sTmp}, s{sTmp}, 2")
    a(f"s_and_b32 s{sTmp2}, s2, 16")
    a(f"s_or_b32 s{sVa}, s{sVa}, s{sTmp2}")
    a(f"s_and_b32 s{sTmp}, s{sTmp}, 8")
    a(f"s_or_b32 s{sVa}, s{sVa}, s{sTmp}")
    a(f"s_cmp_eq_u32 s{sRole}, 1")
    a(f"s_cselect_b32 s{sMaxU}, {maxuC - 1}, 60")
    a(f"s_lshl_b32 s{sTmp}, s{sHead}, 2")
    a(f"s_add_u32 s{sTmp}, s{sTmp}, s{sWave}")
    a(f"s_lshl_b32 s{sTmp}, s{sTmp}, 8")
    a(f"s_add_u32 s{sTmp}, s{sTmp}, {CNT}")
    a(f"v_mov_b32 {vr(vCntA)}, s{sTmp}")
    a(f"v_mov_b32 {vr(vOne)}, 1")
    a(f"v_mov_b32 {vr(vTk)}, 0")
    a(f"v_lshlrev_b32 {vr(vL4)}, 2, v0")
    a(f"s_lshr_b32 s{sTmp3}, s{sVa}, 1")
    a(f"s_lshl_b32 s{sTmp3}, s{sTmp3}, 15")
    a(f"s_and_b32 s{sTmp}, s2, 1")
    a(f"s_lshl_b32 s{sTmp}, s{sTmp}, 12")
    a(f"s_add_u32 s{sTmp3}, s{sTmp3}, s{sTmp}")
    a(f"s_lshl_b32 s{sTmp}, s{sHead}, 24")
    a(f"s_lshl_b32 s{sNB}, s{sChunk}, 19")
    a("s_waitcnt lgkmcnt(0)")
    a(f"s_load_dword s{sTag}, {sp(sWs)}, {EPO}")
    mk_srd(srdK, sKp, 0x1000000, sTmp)
    mk_srd(srdV, sVp, 0x1000000, sTmp)
    a(f"s_bitcmp1_b32 s{sRole}, 0")
    a("s_cbranch_scc1 L_gu")
    a(f"s_cmp_lg_u32 s{sChunk}, 0")
    a("s_cbranch_scc1 L_noclr")
    a("s_mov_b64 exec, 1")
    a(f"global_store_dword {vr(vCntA)}, {vr(vTk)}, {sp(sWs)} sc0 sc1")
    a("s_mov_b64 exec, -1")
    a.label("L_noclr")
    a(f"global_load_dwordx4 {vr(vXP,4)}, {vr(vL16)}, {sp(sX)}")
    a(f"global_load_dwordx4 {vr(vXB,4)}, {vr(vA1)}, {sp(sX)}")
    mk_srd(srdRA, sWq, 0x400000)
    a(f"buffer_load_dwordx4 {vr(vWQ,4)}, {vr(vA2)}, {srd(srdRA)}, 0 offen")
    for j in range(1, 8):
        a(f"s_mov_b32 s{sTmp2}, {j*8192}")
        a(f"buffer_load_dwordx4 {vr(vWQ+4*j,4)}, {vr(vA2)}, {srd(srdRA)}, s{sTmp2} offen")
    a.label("L_gu")
    mk_srd(srdWS, sWs, WS_BYTES)
    mk_srd(srdT, sWs, 0)

    seq = []
    for u in range(4):
        seq += [("K", u, i) for i in range(8)] + [("A", u, 0)] + [("V", u, i) for i in range(8)]
    gend = [9, 17, 26, 34, 43, 51, 60, 68]

    def ring_load(slot, isK, soff):
        a(f"buffer_load_dwordx4 {ar(4 * slot, 4)}, {vr(vKoff if isK else vVoff)}, {srd(srdK if isK else srdV)}, {soff} offen nt")

    def ticket():
        a(f"v_mov_b32 {vr(vTk)}, 1")
        a("s_mov_b64 exec, 1")
        a(f"buffer_atomic_add {vr(vTk)}, {vr(vCntA)}, {srd(srdT)}, 0 offen sc0 sc1")
        a("s_mov_b64 exec, -1")

    def emit_op(op):
        kind, u, i = op
        if kind == "A":
            ticket()
        else:
            a(f"s_add_u32 s{sTmp}, s{sNB}, {(8 * u + i) * 4096}")
            ring_load(u * 16 + (0 if kind == "K" else 8) + i, kind == "K", f"s{sTmp}")

    NF = gend[1]
    a(f"s_cmp_lg_u32 s{sIsA}, 0")
    a("s_cbranch_scc1 L_wo")
    for op in seq[:NF]:
        emit_op(op)
    a("s_branch L_wodone")
    a.label("L_wo")
    mk_srd(srdRA, sWo, 0 if noW else 0x400000)
    for i in range(4):
        if i:
            a(f"s_add_u32 s{sTmp3}, s{sTmp3}, 8192")
        for c in range(4):
            a(f"buffer_load_dwordx4 {vr(vWO + 16*i + 4*c, 4)}, {vr(vL16)}, {srd(srdRA)}, s{sTmp3} offen offset:{c*1024} nt")
    ticket()
    a.label("L_wodone")
    NY = NF
    a(f"v_mov_b32 {vr(vT)}, 0")
    a(f"v_mov_b32 {vr(vT+1)}, 0")
    a(f"ds_write_b64 {vr(vT)}, {vr(vT,2)} offset:{LCNT}")
    a(f"v_and_b32 {vr(vA1)}, 3, {vr(vLane)}")
    a(f"v_lshlrev_b32 {vr(vA1)}, 5, {vr(vA1)}")
    a(f"v_lshrrev_b32 {vr(vA2)}, 4, {vr(vLane)}")
    a(f"v_lshlrev_b32 {vr(vA2)}, 3, {vr(vA2)}")
    a(f"s_lshl_b32 s{sCnt}, s{sCnt}, 1")
    a(f"s_add_u32 s{sCnt}, s{sCnt}, {QG}")
    a(f"v_add3_u32 {vr(vA1)}, {vr(vA1)}, {vr(vA2)}, s{sCnt}")
    a(f"v_and_b32 {vr(vA0)}, 3, {vr(vLane)}")
    a(f"v_lshlrev_b32 {vr(vA0)}, 9, {vr(vA0)}")
    a(f"v_lshrrev_b32 {vr(vA2)}, 2, {vr(vLane)}")
    a(f"v_lshlrev_b32 {vr(vA2)}, 5, {vr(vA2)}")
    a(f"s_lshl_b32 s{sTmp}, s{sHead}, 11")
    a(f"s_add_u32 s{sTmp}, s{sTmp}, {QG}")
    a(f"v_add3_u32 {vr(vA0)}, {vr(vA0)}, {vr(vA2)}, s{sTmp}")
    a(f"v_lshlrev_b32 {vr(vA2)}, 2, {vr(vLane)}")
    qa = vD
    for k in range(8):
        a(f"v_mov_b32 {vr(qa+k)}, 0")
    for k in range(8):
        a(f"v_mov_b32 {vr(vAcc+k)}, 0")
    for k in range(16):
        a(f"v_mov_b32 {vr(vX+k)}, 0")
    a(f"v_mov_b32 {vr(vM)}, 0xff800000")
    a(f"v_mov_b32 {vr(vL)}, 0")
    a(f"v_mov_b32 {vr(vN)}, 0")
    a(f"v_mov_b32 {vr(vRole)}, 0")
    a(f"s_mov_b32 s{sU}, 0")
    a(f"s_mov_b32 s{sLast}, 0")
    vZ = vRole
    a(f"s_bitcmp1_b32 s{sRole}, 0")
    a("s_cbranch_scc1 L_noq")
    dstamp(4)
    a(f"s_waitcnt vmcnt({8 + NY})")
    dstamp(5)
    layernorm([vXP + k for k in range(4)], [vXB + k for k in range(4)], [vXB + k for k in range(4)], vXF, vT + 8)
    for j in range(4):
        a(f"s_waitcnt vmcnt({NY + 6 - 2*j})")
        A_, B_ = vWQ + 8 * j, vWQ + 8 * j + 4
        for k in range(4):
            a(f"v_perm_b32 {vr(vT+2*k)}, {vr(B_+k)}, {vr(A_+k)}, s{sSelLo}")
            a(f"v_perm_b32 {vr(vT+2*k+1)}, {vr(B_+k)}, {vr(A_+k)}, s{sSelHi}")
        for k in range(8):
            a(f"v_dot2c_f32_bf16 {vr(qa+k)}, {vr(vT+k)}, {vr(vXB+j)}")
    dstamp(6)
    halve(32, [qa + k for k in range(4)], [qa + 4 + k for k in range(4)])
    halve(16, [qa, qa + 1], [qa + 2, qa + 3])
    halve_dpp(4, [qa], [qa + 1])
    dpp_steps("v_add_f32", [qa], ["row_ror:8"])
    a(f"ds_write_b32 {vr(vL4)}, {vr(qa)} offset:{LR}")
    a.label("L_noq")
    a("s_waitcnt lgkmcnt(0)")
    a(f"s_mul_i32 s{sTag}, s{sTag}, 0x9e3779b1")
    a(f"s_add_u32 s{sTag}, s{sTag}, 0x7f4a7c15")
    a("s_barrier")
    dstamp(8)
    a(f"s_cmp_eq_u32 s{sIsT}, 0")
    a("s_cbranch_scc1 L_pre")

    def tagcheck(regs, t):
        a(f"v_xor_b32 {vr(t)}, s{sTag}, {vr(regs[0])}")
        for r in regs[1:]:
            a(f"v_bitop3_b32 {vr(t)}, {vr(t)}, {vr(r)}, s{sTag} bitop3:0xf6")

    def spin(name, body, sleep=0):
        a(f"s_mov_b32 s{sCnt}, {maxpoll}")
        a.label(f"L_{name}")
        body()
        a(f"s_cbranch_vccz L_{name}_ok")
        a("s_mov_b64 exec, vcc")
        if sleep:
            a(f"s_sleep {sleep}")
        a(f"s_sub_u32 s{sCnt}, s{sCnt}, 1")
        a(f"s_cmp_lg_u32 s{sCnt}, 0")
        a(f"s_cbranch_scc1 L_{name}")
        a.label(f"L_{name}_ok")
        a("s_mov_b64 exec, -1")

    def tagbytes():
        a(f"v_mov_b32 {vr(vT)}, s{sTag}")
        for k in range(4):
            a(f"v_bfe_u32 {vr(vTB+k)}, {vr(vT)}, {8*k}, 8")
        a(f"v_and_b32 {vr(vT+1)}, 1, {vr(vLane)}")
        a(f"v_lshlrev_b32 {vr(vT+1)}, 4, {vr(vT+1)}")
        a(f"v_lshrrev_b32 {vr(vT)}, {vr(vT+1)}, {vr(vT)}")
        a(f"v_and_b32 {vr(vTC)}, 0xff, {vr(vT)}")
        a(f"v_bfe_u32 {vr(vTC+1)}, {vr(vT)}, 8, 8")

    a(f"s_bitcmp1_b32 s{sRole}, 0")
    a("s_cbranch_scc1 L_nopub")
    a(f"ds_read2st64_b32 {vr(vT,2)}, {vr(vA2)} offset0:{LR//256} offset1:{LR//256+1}")
    a(f"ds_read2st64_b32 {vr(vT+2,2)}, {vr(vA2)} offset0:{LR//256+2} offset1:{LR//256+3}")
    a(f"v_mov_b32 {vr(vT+5)}, s{sTag}")
    a("s_waitcnt lgkmcnt(0)")
    a(f"v_add_f32 {vr(vT)}, {vr(vT)}, {vr(vT+1)}")
    a(f"v_add_f32 {vr(vT+2)}, {vr(vT+2)}, {vr(vT+3)}")
    a(f"v_add_f32 {vr(vT)}, {vr(vT)}, {vr(vT+2)}")
    a(f"v_mov_b32_dpp {vr(vT+1)}, {vr(vT)} row_ror:12 {DPPF}")
    a(f"v_cvt_pk_bf16_f32 {vr(vT+4)}, {vr(vT)}, {vr(vT+1)}")
    a(f"s_mov_b32 exec_lo, 0x000f000f")
    a(f"s_mov_b32 exec_hi, 0x000f000f")
    a(f"buffer_store_dwordx2 {vr(vT+4,2)}, {vr(vA1)}, {srd(srdWS)}, 0 offen sc1")
    a("s_mov_b64 exec, -1")
    for op in seq[:NF]:
        emit_op(op)
    a.label("L_nopub")
    stamp(1)
    tagbytes()

    def bodyQ():
        r = vPoll
        a(f"buffer_load_dwordx4 {vr(r,4)}, {vr(vA0)}, {srd(srdWS)}, 0 offen sc1")
        a(f"buffer_load_dwordx4 {vr(r+4,4)}, {vr(vA0)}, {srd(srdWS)}, 0 offen offset:16 sc1")
        a("s_waitcnt vmcnt(0)")
        tagcheck([r + 1, r + 3, r + 5, r + 7], vT)
        a(f"v_cmp_ne_u32 vcc, 0, {vr(vT)}")
    spin("hQ", bodyQ, slQ)
    for k in range(4):
        a(f"v_mov_b32 {vr(vQ+k)}, {vr(vPoll+2*k)}")
    a(f"ds_write_b128 {vr(vL16)}, {vr(vQ,4)} offset:{LQ}")
    a(f"ds_write_b32 {vr(vZ)}, {vr(vOne)} offset:{LCNT+4}")
    a(f"s_mov_b32 s{sSkW}, 2")
    a(f"s_mov_b32 s{sSkI}, 0")
    a("s_branch L_qdone")

    a.label("L_pre")
    stamp(1)
    tagbytes()

    def qlook():
        a(f"ds_read_b32 {vr(vFlag)}, {vr(vZ)} offset:{LCNT+4}")
        a(f"ds_read_b128 {vr(vQ,4)}, {vr(vL16)} offset:{LQ}")
        a("s_waitcnt lgkmcnt(0)")
        a(f"v_cmp_ne_u32 vcc, 0, {vr(vFlag)}")

    a(f"s_cmp_eq_u32 s{sIsA}, 0")
    a("s_cbranch_scc1 L_pre1")
    for n in range(0, len(seq)):
        if n == NF:
            a.label("L_pre1")
        a(f"s_waitcnt vmcnt({T-1})")
        emit_op(seq[n])
        if n + 1 in gend[1:]:
            I = gend.index(n + 1) + 1
            a(f"s_mov_b32 s{sSkW}, {sum(1 for e in gend if e <= n + 1 - T)}")
            a(f"s_mov_b32 s{sSkI}, {I - 2}")
            if n + 1 < len(seq):
                qlook()
                a("s_cbranch_vccnz L_qdone")
    a(f"s_mov_b32 s{sCnt}, {maxpoll * 8}")
    a.label("L_qspin")
    qlook()
    a("s_cbranch_vccnz L_qdone")
    a("s_sleep 2")
    a(f"s_sub_u32 s{sCnt}, s{sCnt}, 1")
    a(f"s_cmp_lg_u32 s{sCnt}, 0")
    a("s_cbranch_scc1 L_qspin")
    a.label("L_qdone")
    stamp(2)

    Sa, Sb, P = vT, vT + 1, vT + 2
    TT = [[vT + 4, vT + 5], [vT + 6, vT + 7]]
    Plo, Phi = [vT + 8, vT + 10], [vT + 9, vT + 11]
    t0, t1 = vT + 12, vT + 13

    wmap = {}
    def wperm(which):
        spare = vSp
        prs = []
        if which == "O":
            for pr in range(8):
                prs += [(("O", pr, 2 * k), vWO + 8 * pr + k, vWO + 8 * pr + 4 + k) for k in range(4)]
        else:
            for pr in range(4):
                prs += [(("G", pr, 2 * k), vGU + 8 * pr + k, vGU + 8 * pr + 4 + k) for k in range(4)]
            for pr in range(8):
                prs += [(("D", pr, 0), vWD + 2 * pr, vWD + 2 * pr + 1)]
        for (nm, pr, c), A_, B_ in prs:
            a(f"v_perm_b32 {vr(spare)}, {vr(B_)}, {vr(A_)}, s{sSelLo}")
            a(f"v_perm_b32 {vr(B_)}, {vr(B_)}, {vr(A_)}, s{sSelHi}")
            wmap[(nm, pr, c)] = spare
            wmap[(nm, pr, c + 1)] = B_
            spare = A_

    def gwait(lab, n):
        a(f"s_sub_u32 s{sSkW}, s{sSkW}, 1")
        a(f"s_cbranch_scc0 {lab}")
        a(f"s_mov_b32 s{sSkW}, 0")
        a(f"s_waitcnt vmcnt({n})")
        a.label(lab)

    def issue(uu, isK):
        lab = f"L_sk{uu}{'K' if isK else 'V'}"
        a(f"s_sub_u32 s{sSkI}, s{sSkI}, 1")
        a(f"s_cbranch_scc0 {lab}")
        a(f"s_mov_b32 s{sSkI}, 0")
        for i in range(8):
            slot = ((uu + 1) % 4) * 16 + (0 if isK else 8) + i
            if i == 0:
                ring_load(slot, isK, f"s{sNB}")
            else:
                a(f"s_add_u32 s{sTmp}, s{sNB}, {i * 4096}")
                ring_load(slot, isK, f"s{sTmp}")
        if isK:
            ticket()
        a.label(lab)

    a.label("L_loop")
    for uu in range(4):
        gwait(f"L_gwK{uu}", 8)
        for i in range(8):
            a(f"v_mfma_f32_16x16x32_bf16 {vr(vD+4*i,4)}, {ar((uu*16+i)*4,4)}, {vr(vQ,4)}, 0")
        if stamps:
            a("s_add_u32 s76, s76, 1")
        a(f"s_add_u32 s{sU}, s{sU}, 1")
        a(f"s_add_u32 s{sNB}, s{sNB}, 0x8000")
        a(f"s_cmp_lt_u32 s{sU}, {S}")
        a(f"s_cbranch_scc1 L_st{uu}")
        if dyn:
            a(f"v_readfirstlane_b32 s{sTmp}, {vr(vTk)}")
            a(f"s_and_b32 s{sNB}, s{sTmp}, 31")
            a(f"s_lshl_b32 s{sNB}, s{sNB}, 19")
            a(f"s_lshr_b32 s{sTmp2}, s{sTmp}, 5")
            a(f"s_add_u32 s{sTmp2}, s{sTmp2}, {S}")
            a(f"s_lshl_b32 s{sTmp2}, s{sTmp2}, 15")
            a(f"s_add_u32 s{sNB}, s{sNB}, s{sTmp2}")
            a(f"s_cmp_gt_u32 s{sU}, s{sMaxU}")
            a(f"s_cselect_b32 s{sTmp}, {NTICK}, s{sTmp}")
            a(f"s_cmp_lt_u32 s{sTmp}, {NTICK}")
            a(f"s_cbranch_scc1 L_st{uu}")
        a(f"s_mov_b32 s{sLast}, 1")
        a(f"s_mov_b32 s{sNB}, 0")
        a(f"s_mov_b32 s{srdK+2}, 0")
        a(f"s_mov_b32 s{srdV+2}, 0")
        a(f"s_mov_b32 s{sU}, 0")
        a.label(f"L_st{uu}")
        if dyn:
            a(f"s_cmp_ge_u32 s{sU}, {S-1}")
            a(f"s_cselect_b32 s{srdT+2}, {WS_BYTES}, 0")
            a(f"s_cmp_ge_u32 s{sU}, s{sMaxU}")
            a(f"s_cselect_b32 s{srdT+2}, 0, s{srdT+2}")
        issue(uu, True)
        for step in range(2):
            for j in range(4):
                for half in range(2):
                    for spn in range(2):
                        s = 2 * spn + step
                        dst = TT[half][spn]
                        src = vD + 4 * (4 * half + j) + s
                        if step == 0:
                            a(f"v_mov_b32_dpp {vr(dst)}, {vr(src)} {ror(4*(j-s))} row_mask:0xf bank_mask:{1<<j:#x}")
                        else:
                            a(f"v_add_f32_dpp {vr(dst)}, {vr(src)}, {vr(dst)} {ror(4*(j-s))} row_mask:0xf bank_mask:{1<<j:#x}")
        a(f"v_add_f32 {vr(Sa)}, {vr(TT[0][0])}, {vr(TT[0][1])}")
        a(f"v_add_f32 {vr(Sb)}, {vr(TT[1][0])}, {vr(TT[1][1])}")
        a(f"v_cvt_pk_bf16_f32 {vr(P)}, {vr(Sa)}, {vr(Sb)}")
        unpack(P, Sa, Sb)
        a(f"v_mul_f32 {vr(Sa)}, {f32(SCALE)}, {vr(Sa)}")
        a(f"v_mul_f32 {vr(Sb)}, {f32(SCALE)}, {vr(Sb)}")
        a(f"v_cvt_pk_bf16_f32 {vr(P)}, {vr(Sa)}, {vr(Sb)}")
        unpack(P, Sa, Sb)
        a(f"v_max_f32 {vr(t0)}, {vr(Sa)}, {vr(Sb)}")
        a(f"v_cmp_gt_f32 vcc, {vr(t0)}, {vr(vM)}")
        a(f"s_cbranch_vccz L_nors{uu}")
        dpp_steps("v_max_f32", [t0], ["row_ror:4", "row_ror:8"])
        xrow("v_max_f32", [t0], [t1], 16)
        xrow("v_max_f32", [t0], [t1], 32)
        a(f"v_max_f32 {vr(t0)}, {vr(t0)}, {vr(vM)}")
        a(f"v_sub_f32 {vr(t1)}, {vr(vM)}, {vr(t0)}")
        a(f"v_mul_f32 {vr(t1)}, {f32(LOG2E)}, {vr(t1)}")
        a(f"v_exp_f32 {vr(t1)}, {vr(t1)}")
        a(f"v_mov_b32 {vr(vM)}, {vr(t0)}")
        a(f"v_mul_f32 {vr(vN)}, {f32(-LOG2E)}, {vr(t0)}")
        a(f"v_mul_f32 {vr(vL)}, {vr(vL)}, {vr(t1)}")
        for k in range(8):
            a(f"v_mul_f32 {vr(vAcc+k)}, {vr(vAcc+k)}, {vr(t1)}")
        a.label(f"L_nors{uu}")
        a(f"v_fma_f32 {vr(Sa)}, {vr(Sa)}, s{sL2E}, {vr(vN)}")
        a(f"v_fma_f32 {vr(Sb)}, {vr(Sb)}, s{sL2E}, {vr(vN)}")
        a(f"v_exp_f32 {vr(Sa)}, {vr(Sa)}")
        a(f"v_exp_f32 {vr(Sb)}, {vr(Sb)}")
        a(f"v_add_f32 {vr(vL)}, {vr(vL)}, {vr(Sa)}")
        a(f"v_cvt_pk_bf16_f32 {vr(P)}, {vr(Sa)}, {vr(Sb)}")
        a(f"v_add_f32 {vr(vL)}, {vr(vL)}, {vr(Sb)}")
        a(f"v_and_b32 {vr(Plo[0])}, 0xffff, {vr(P)}")
        a(f"v_lshlrev_b32 {vr(Phi[0])}, 16, {vr(P)}")
        a(f"v_lshrrev_b32 {vr(Plo[1])}, 16, {vr(P)}")
        a(f"v_and_b32 {vr(Phi[1])}, 0xffff0000, {vr(P)}")
        for i0 in (0, 2, 4, 6):
            for c in range(2):
                for i in (i0, i0 + 1):
                    half, j = i >> 2, i & 3
                    src = (Plo if c == 0 else Phi)[half]
                    for x in range(2):
                        bank = 2 * x + c
                        a(f"v_mov_b32_dpp {vr(vX+2*i+x)}, {vr(src)} {ror(4*(bank-j))} row_mask:0xf bank_mask:{1<<bank:#x}")
        gwait(f"L_gwV{uu}", 9)
        for i in range(8):
            sl = (uu * 16 + 8 + i) * 4
            a(f"v_mfma_f32_16x16x16_bf16 {vr(vAcc,4)}, {ar(sl,2)}, {vr(vX+2*i,2)}, {vr(vAcc,4)}")
            a(f"v_mfma_f32_16x16x16_bf16 {vr(vAcc+4,4)}, {ar(sl+2,2)}, {vr(vX+2*i,2)}, {vr(vAcc+4,4)}")
        a(f"s_cmp_lg_u32 s{sLast}, 0")
        a("s_cbranch_scc1 L_done")
        issue(uu, False)
    a(f"s_cmp_lg_u32 s{sU}, 8")
    a("s_cbranch_scc1 L_loop")
    wperm('O')
    a.flush()
    a("s_branch L_loop")
    a.label("L_done")
    stamp(3)

    a(f"v_lshlrev_b32 {vr(vA1)}, 3, {vr(vLane)}")
    a(f"s_lshl_b32 s{sTmp}, s{sWave}, 11")
    a(f"v_add_u32 {vr(vA2)}, s{sTmp}, {vr(vL16)}")
    a(f"v_lshlrev_b32 {vr(t0)}, 1, {vr(vL4)}")
    a(f"ds_write_b64 {vr(t0)}, {vr(vN,2)} offset:{LML}")
    a(f"ds_write_b128 {vr(vA2)}, {vr(vAcc,4)} offset:{LO}")
    a(f"ds_write_b128 {vr(vA2)}, {vr(vAcc+4,4)} offset:{LO+1024}")
    a("s_mov_b64 exec, 1")
    a(f"ds_add_rtn_u32 {vr(t1)}, {vr(vZ)}, {vr(vOne)} offset:{LCNT}")
    a("s_mov_b64 exec, -1")
    ML = vX
    OO = vD
    for w in range(4):
        a(f"ds_read_b64 {vr(ML+2*w,2)}, {vr(vA1)} offset:{LML + w*512}")
    for w in range(4):
        for t in range(2):
            a(f"ds_read_b128 {vr(OO+8*w+4*t,4)}, {vr(vL16)} offset:{LO + w*2048 + t*1024}")
    a(f"v_and_b32 {vr(vA0)}, 3, {vr(vLane)}")
    a(f"v_lshlrev_b32 {vr(vA0)}, 10, {vr(vA0)}")
    a(f"v_lshrrev_b32 {vr(vA1)}, 4, {vr(vLane)}")
    a(f"v_lshlrev_b32 {vr(vA1)}, 7, {vr(vA1)}")
    a(f"v_and_b32 {vr(vA2)}, 12, {vr(vLane)}")
    a(f"v_lshlrev_b32 {vr(vA2)}, 2, {vr(vA2)}")
    a(f"v_add3_u32 {vr(vA1)}, {vr(vA0)}, {vr(vA1)}, {vr(vA2)}")
    a(f"s_lshl_b32 s{sTmp}, s2, 12")
    a(f"s_add_u32 s{sTmp}, s{sTmp}, {PA}")
    a("s_waitcnt lgkmcnt(12)")
    a(f"v_readfirstlane_b32 s{sArr}, {vr(t1)}")
    a(f"s_cmp_lg_u32 s{sArr}, 3")
    a("s_cbranch_scc1 L_nopa")
    a("s_waitcnt lgkmcnt(8)")
    R = vT
    a(f"v_min_f32 {vr(R)}, {vr(ML)}, {vr(ML+2)}")
    a(f"v_min3_f32 {vr(R)}, {vr(R)}, {vr(ML+4)}, {vr(ML+6)}")
    for w in range(4):
        a(f"v_sub_f32 {vr(ML+2*w)}, {vr(R)}, {vr(ML+2*w)}")
    for w in range(4):
        a(f"v_exp_f32 {vr(ML+2*w)}, {vr(ML+2*w)}")
    a(f"v_mov_b32 {vr(R+2)}, s{sTag}")
    a(f"v_mul_f32 {vr(R+1)}, {vr(ML)}, {vr(ML+1)}")
    for w in range(1, 4):
        a(f"v_fmac_f32 {vr(R+1)}, {vr(ML+2*w)}, {vr(ML+2*w+1)}")
    a("s_waitcnt lgkmcnt(0)")
    for t in range(2):
        for k in range(4):
            a(f"v_mul_f32 {vr(OO+4*t+k)}, {vr(OO+4*t+k)}, {vr(ML)}")
        if t == 0:
            a(f"v_add_f32_dpp {vr(R+1)}, {vr(R+1)}, {vr(R+1)} row_ror:4 {DPPF}")
        for w in range(1, 4):
            for k in range(4):
                a(f"v_fmac_f32 {vr(OO+4*t+k)}, {vr(OO+8*w+4*t+k)}, {vr(ML+2*w)}")
            if t == 0 and w == 1:
                a(f"v_add_f32_dpp {vr(R+1)}, {vr(R+1)}, {vr(R+1)} row_ror:8 {DPPF}")
            if t == 0 and w == 2:
                a(f"v_mov_b32 {vr(t1)}, {vr(R+1)}")
            if t == 0 and w == 3:
                a(f"v_permlane16_swap_b32 {vr(R+1)}, {vr(t1)}")
            if t == 1 and w == 1:
                a(f"v_permlane32_swap_b32 {vr(R+1)}, {vr(t1)}")
        for k in range(4):
            a(f"v_and_or_b32 {vr(OO+4*t+k)}, {vr(OO+4*t+k)}, s{sHiM}, {vr(vTB+k)}")
        if t == 0:
            a(f"v_add_f32 {vr(R+1)}, {vr(R+1)}, {vr(t1)}")
            a(f"v_mov_b32 {vr(t1)}, {vr(R+1)}")
        else:
            a(f"v_add_f32 {vr(R+1)}, {vr(R+1)}, {vr(t1)}")
        a(f"buffer_store_dwordx4 {vr(OO+4*t,4)}, {vr(vA1)}, {srd(srdWS)}, s{sTmp} offen offset:{64*t} sc1")
    a("s_mov_b64 exec, 15")
    a(f"buffer_store_dwordx3 {vr(R,3)}, {vr(vA0)}, {srd(srdWS)}, s{sTmp} offen offset:512 sc1")
    a("s_mov_b64 exec, -1")
    stamp(4)
    a.label("L_nopa")
    a("s_waitcnt lgkmcnt(0)")
    if notail:
        a("s_branch L_fin")
    acc = vD + 16
    oa = vX + 8
    for k in range(16):
        a(f"v_mov_b32 {vr(acc+k)}, 0")
    for k in range(8):
        a(f"v_mov_b32 {vr(oa+k)}, 0")
    a(f"s_cmp_eq_u32 s{sRole}, 1")
    a("s_cbranch_scc1 L_roleC")
    a(f"s_cmp_eq_u32 s{sIsA}, 0")
    a("s_cbranch_scc1 L_fin")

    def bytecheck(regs, t, first=True):
        for k, r in enumerate(regs):
            if first and k == 0:
                a(f"v_xor_b32 {vr(t)}, {vr(r)}, {vr(vTB)}")
            else:
                a(f"v_bitop3_b32 {vr(t)}, {vr(t)}, {vr(r)}, {vr(vTB + k % 4)} bitop3:0xf6")

    a.label("L_tail")
    a(f"v_lshrrev_b32 {vr(vA0)}, 2, {vr(vLane)}")
    a(f"v_lshlrev_b32 {vr(vA0)}, 12, {vr(vA0)}")
    a(f"v_and_b32 {vr(vA1)}, 3, {vr(vLane)}")
    a(f"v_lshlrev_b32 {vr(vA1)}, 4, {vr(vA1)}")
    a(f"s_lshl_b32 s{sTmp}, s{sXc}, 6")
    a(f"v_add3_u32 {vr(vA1)}, {vr(vA1)}, {vr(vA0)}, s{sTmp}")
    a(f"s_lshl_b32 s{sTmp}, s{sHead}, 17")
    a(f"s_and_b32 s{sTmp2}, s{sVa}, 24")
    a(f"s_lshl_b32 s{sTmp2}, s{sTmp2}, 7")
    a(f"s_add_u32 s{sTmp}, s{sTmp}, s{sTmp2}")
    a(f"s_add_u32 s{sTmp}, s{sTmp}, {PA}")
    a(f"s_add_u32 s{sTmp2}, s{sTmp}, 0x10000")
    a(f"s_lshl_b32 s{sTmp3}, s{sVa}, 11")
    a(f"s_add_u32 s{sTmp3}, s{sTmp3}, {OP}")
    G0, G1, L0, L1 = vD, vD + 4, vD + 8, vD + 12

    def bodyA():
        a(f"buffer_load_dwordx3 {vr(L0,3)}, {vr(vA0)}, {srd(srdWS)}, s{sTmp} offen offset:512 sc1")
        a(f"buffer_load_dwordx3 {vr(L1,3)}, {vr(vA0)}, {srd(srdWS)}, s{sTmp2} offen offset:512 sc1")
        a(f"buffer_load_dwordx4 {vr(G0,4)}, {vr(vA1)}, {srd(srdWS)}, s{sTmp} offen sc1")
        a(f"buffer_load_dwordx4 {vr(G1,4)}, {vr(vA1)}, {srd(srdWS)}, s{sTmp2} offen sc1")
        a("s_waitcnt vmcnt(2)")
        tagcheck([L0 + 2, L1 + 2], t0)
        a(f"v_min_f32 {vr(vT)}, {vr(L0)}, {vr(L1)}")
        a("s_waitcnt vmcnt(1)")
        bytecheck([G0 + k for k in range(4)], t1)
        a("s_waitcnt vmcnt(0)")
        bytecheck([G1 + k for k in range(4)], t1, first=False)
        a(f"v_lshl_or_b32 {vr(t0)}, {vr(t1)}, 24, {vr(t0)}")
        a(f"v_cmp_ne_u32 vcc, 0, {vr(t0)}")
    spin("hA", bodyA)
    stamp(8)
    Mx, Ls = vT, vT + 1
    dpp_steps("v_min_f32", [Mx], ["row_ror:4", "row_ror:8"])
    xrow("v_min_f32", [Mx], [t1], 16)
    xrow("v_min_f32", [Mx], [t1], 32)
    a(f"v_sub_f32 {vr(L0)}, {vr(Mx)}, {vr(L0)}")
    a(f"v_sub_f32 {vr(L1)}, {vr(Mx)}, {vr(L1)}")
    a(f"v_exp_f32 {vr(L0)}, {vr(L0)}")
    a(f"v_exp_f32 {vr(L1)}, {vr(L1)}")
    a(f"v_mul_f32 {vr(Ls)}, {vr(L0)}, {vr(L0+1)}")
    a(f"v_fmac_f32 {vr(Ls)}, {vr(L1)}, {vr(L1+1)}")
    for k in range(4):
        a(f"v_mul_f32 {vr(G0+k)}, {vr(G0+k)}, {vr(L0)}")
    a(f"v_add_f32_dpp {vr(Ls)}, {vr(Ls)}, {vr(Ls)} row_ror:4 {DPPF}")
    for k in range(4):
        a(f"v_fmac_f32 {vr(G0+k)}, {vr(G1+k)}, {vr(L1)}")
    a(f"v_add_f32_dpp {vr(Ls)}, {vr(Ls)}, {vr(Ls)} row_ror:8 {DPPF}")
    a(f"v_mov_b32 {vr(t1)}, {vr(Ls)}")
    halve(32, [G0, G0 + 1, Ls], [G0 + 2, G0 + 3, t1])
    a(f"v_mov_b32 {vr(t1)}, {vr(Ls)}")
    halve(16, [G0, Ls], [G0 + 1, t1])
    a(f"v_rcp_f32 {vr(Ls)}, {vr(Ls)}")
    dpp_steps("v_add_f32", [G0], ["row_ror:4", "row_ror:8"])
    a(f"v_mul_f32 {vr(G0)}, {vr(G0)}, {vr(Ls)}")
    a(f"v_mov_b32_dpp {vr(t1)}, {vr(G0)} quad_perm:[1,1,3,3] {DPPF}")
    a(f"v_cvt_pk_bf16_f32 {vr(vT+4)}, {vr(G0)}, {vr(t1)}")
    for pr in range(8):
        a(f"v_readlane_b32 s{sP+pr}, {vr(vT+4)}, {16*(pr>>1) + 2*(pr&1)}")
    for hf in range(2):
        for pr in range(8):
            for c in range(4 * hf, 4 * hf + 4):
                a(f"v_dot2c_f32_bf16 {vr(oa+c)}, s{sP+pr}, {vr(wmap[('O', pr, c)])}")
            if hf == 1 and pr == 0:
                for k in range(4):
                    a(f"v_and_or_b32 {vr(oa+k)}, {vr(oa+k)}, s{sHiM}, {vr(vTB+k)}")
                a(f"buffer_store_dwordx4 {vr(oa,4)}, {vr(vL16)}, {srd(srdWS)}, s{sTmp3} offen sc1")
    for k in range(4):
        a(f"v_and_or_b32 {vr(oa+4+k)}, {vr(oa+4+k)}, s{sHiM}, {vr(vTB+k)}")
    a(f"buffer_store_dwordx4 {vr(oa+4,4)}, {vr(vL16)}, {srd(srdWS)}, s{sTmp3} offen offset:1024 sc1")
    stamp(5)

    a(f"s_cmp_eq_u32 s{sIsT}, 0")
    a("s_cbranch_scc1 L_fin")
    a(f"v_mov_b32 {vr(vT+5)}, s{sTag}")
    a(f"v_and_b32 {vr(vT+8)}, 1, {vr(vLane)}")
    a(f"v_lshrrev_b32 {vr(vT+9)}, 5, {vr(vLane)}")
    a(f"v_lshrrev_b32 {vr(vT+10)}, 1, {vr(vLane)}")
    a(f"v_and_b32 {vr(vT+7)}, 4, {vr(vLane)}")
    a(f"v_lshlrev_b32 {vr(vT+7)}, 2, {vr(vT+7)}")
    a(f"v_sub_u32 {vr(vT+7)}, 16, {vr(vT+7)}")
    a(f"v_lshlrev_b32 {vr(vT+11)}, 4, {vr(vT+8)}")
    a(f"s_cmp_eq_u32 s{sRole}, 2")
    a("s_cbranch_scc1 L_roleD")

    def reduce_body(n, soffs):
        def f():
            for i in range(n):
                a(f"buffer_load_dwordx4 {vr(vD+4*i,4)}, {vr(vA0)}, {srd(srdWS)}, s{soffs[i>>1]} offen offset:{(i&1)*2048} sc1")
            for i in range(n):
                a(f"s_waitcnt vmcnt({n-1-i})")
                bytecheck([vD + 4 * i + k for k in range(4)], t0, first=(i == 0))
                if i == 1:
                    for k in (0, 2):
                        a(f"v_pk_add_f32 {vr(vX+4+k,2)}, {vr(vD+k,2)}, {vr(vD+4+k,2)}")
                elif i > 1:
                    for k in (0, 2):
                        a(f"v_pk_add_f32 {vr(vX+4+k,2)}, {vr(vX+4+k,2)}, {vr(vD+4*i+k,2)}")
            a(f"v_cmp_ne_u32_sdwa vcc, {vr(t0)}, {vr(vZ)} src0_sel:BYTE_0 src1_sel:DWORD")
        return f

    def bd_finish(res):
        r = vX + 4
        halve(32, [r, r + 1], [r + 2, r + 3])
        halve_dpp(4, [r], [r + 1])
        dpp_steps("v_add_f32", [r], ["row_ror:8", "quad_perm:[2,3,0,1]"])
        xrow("v_add_f32", [r], [r + 1], 16)
        bf16r(vT, r)
        a(f"v_add_f32 {vr(vT)}, {vr(vT)}, {vr(res)}")
        a(f"v_mov_b32_dpp {vr(vT+1)}, {vr(vT)} row_ror:12 {DPPF}")
        a(f"v_cvt_pk_bf16_f32 {vr(vT+4)}, {vr(vT)}, {vr(vT+1)}")
        a(f"s_mov_b32 exec_lo, 3")
        a(f"s_mov_b32 exec_hi, 3")

    RS = vX
    a(f"s_and_b32 s{sTmp}, s{sIdx}, 31")
    a(f"s_lshl_b32 s{sTmp}, s{sTmp}, 5")
    a(f"s_lshr_b32 s{sTmp2}, s{sIdx}, 5")
    a(f"s_lshl_b32 s{sTmp3}, s{sTmp2}, 3")
    a(f"s_add_u32 s{sTmp3}, s{sTmp3}, s{sTmp}")
    a(f"v_lshl_add_u32 {vr(vA0)}, {vr(vT+9)}, 2, {vr(vT+11)}")
    a(f"v_add_u32 {vr(vA0)}, s{sTmp3}, {vr(vA0)}")
    a(f"global_load_dword {vr(RS)}, {vr(vA0)}, {sp(sX)}")
    a(f"s_lshl_b32 s{sTmp2}, s{sTmp2}, 10")
    a(f"s_add_u32 s{sTmp}, s{sTmp}, s{sTmp2}")
    for k in range(4):
        a(f"s_add_u32 s{sP+k}, s{sTmp}, {OP + k*4096}")
    a(f"v_lshl_add_u32 {vr(vA0)}, {vr(vT+10)}, 14, {vr(vT+11)}")
    a(f"v_lshl_add_u32 {vr(vA1)}, {vr(vT+9)}, 3, {vr(vT+11)}")
    a(f"s_lshl_b32 s{sTmp2}, s{sIdx}, 6")
    a(f"s_add_u32 s{sTmp2}, s{sTmp2}, {HG}")
    if slB:
        a(f"s_sleep {slB}")
    spin("hB", reduce_body(8, [sP + k for k in range(4)]))
    stamp(6)
    a(f"v_lshlrev_b32 {vr(RS)}, {vr(vT+7)}, {vr(RS)}")
    a(f"v_and_b32 {vr(RS)}, 0xffff0000, {vr(RS)}")
    bd_finish(RS)
    a(f"buffer_store_dwordx2 {vr(vT+4,2)}, {vr(vA1)}, {srd(srdWS)}, s{sTmp2} offen sc1")
    a("s_branch L_fin")

    a.label("L_roleD")
    a(f"v_lshlrev_b32 {vr(vA0)}, 11, {vr(vT+8)}")
    a(f"v_lshl_add_u32 {vr(vA0)}, {vr(vT+9)}, 3, {vr(vA0)}")
    a(f"s_lshr_b32 s{sTmp}, s{sIdx}, 1")
    a(f"s_lshl_b32 s{sTmp}, s{sTmp}, 6")
    a(f"s_and_b32 s{sTmp2}, s{sIdx}, 1")
    a(f"s_lshl_b32 s{sTmp2}, s{sTmp2}, 4")
    a(f"s_add_u32 s{sTmp}, s{sTmp}, s{sTmp2}")
    a(f"s_add_u32 s{sTmp}, s{sTmp}, {HG}")
    for k in range(4):
        a(f"v_mov_b32 {vr(vX+4+k)}, 0")

    def bodyD1():
        a(f"buffer_load_dwordx2 {vr(RS,2)}, {vr(vA0)}, {srd(srdWS)}, s{sTmp} offen sc1")
        a("s_waitcnt vmcnt(0)")
        a(f"v_cmp_ne_u32 vcc, s{sTag}, {vr(RS+1)}")
    spin("hD1", bodyD1, 4)
    a(f"v_lshlrev_b32 {vr(RS)}, {vr(vT+7)}, {vr(RS)}")
    a(f"v_and_b32 {vr(RS)}, 0xffff0000, {vr(RS)}")
    a(f"s_lshl_b32 s{sTmp}, s{sIdx}, 4")
    a(f"v_lshlrev_b32 {vr(vA1)}, 3, {vr(vT+8)}")
    a(f"v_lshl_add_u32 {vr(vA1)}, {vr(vT+9)}, 2, {vr(vA1)}")
    a(f"v_add_u32 {vr(vA1)}, s{sTmp}, {vr(vA1)}")
    a(f"s_lshl_b32 s{sTmp}, s{sIdx}, 5")
    for k in range(2):
        a(f"s_add_u32 s{sP+k}, s{sTmp}, {DP + k*4096}")
    a(f"v_lshl_add_u32 {vr(vA0)}, {vr(vT+10)}, 13, {vr(vT+11)}")
    if slD:
        a(f"s_sleep {slD}")
    a("s_mov_b32 exec_hi, 0x00ffffff")
    spin("hD", reduce_body(4, [sP, sP + 1]))
    stamp(6)
    bd_finish(RS)
    a(f"global_store_dword {vr(vA1)}, {vr(vT+4)}, {sp(sOut)}")
    a(f"s_cmp_lg_u32 s{sIdx}, 0")
    a("s_cbranch_scc1 L_fin")
    a("s_mov_b64 exec, 1")
    a(f"buffer_store_dword {vr(vT+5)}, {vr(vZ)}, {srd(srdWS)}, 0 offen offset:{EPO} sc0 sc1")
    a("s_branch L_fin")

    a.label("L_roleC")
    a(f"v_lshrrev_b32 {vr(vA0)}, 1, v0")
    a(f"v_mul_u32_u24 {vr(vA0)}, {4*3584}, {vr(vA0)}")
    a(f"v_and_b32 {vr(vA1)}, 16, {vr(vL16)}")
    a(f"s_lshl_b32 s{sTmp}, s{sIdx}, 5")
    a(f"v_add3_u32 {vr(vA0)}, {vr(vA0)}, {vr(vA1)}, s{sTmp}")
    mk_srd(srdRA, sWg, 0 if noW else 512 * 3584)
    mk_srd(srdRB, sWu, 0 if noW else 512 * 3584)
    mk_srd(srdK, sWd, 0 if noW else 1792 * 1024)
    a("s_barrier")
    for j in range(4):
        if j:
            a(f"s_mov_b32 s{sTmp}, {j * 3584}")
        for m in range(2):
            a(f"buffer_load_dwordx4 {vr(vGU + 16*m + 4*j, 4)}, {vr(vA0)}, {srd(srdRA if m == 0 else srdRB)}, {'s%d' % sTmp if j else '0'} offen")
    a(f"s_lshl_b32 s{sTmp}, s{sIdx}, 14")
    for j in range(16):
        if j and j % 4 == 0:
            a(f"s_add_u32 s{sTmp}, s{sTmp}, 4096")
        a(f"buffer_load_dword {vr(vWD + j)}, {vr(vL4)}, {srd(srdK)}, s{sTmp} offen offset:{(j % 4) * 1024} nt")
    a("s_waitcnt vmcnt(0)")
    stamp(5)
    wperm("C")
    a(f"s_cmp_eq_u32 s{sIsT}, 0")
    a("s_cbranch_scc1 L_Cpre")
    a(f"v_lshrrev_b32 {vr(vA0)}, 1, {vr(vLane)}")
    a(f"v_lshlrev_b32 {vr(vA0)}, 6, {vr(vA0)}")
    a(f"v_and_b32 {vr(vT)}, 1, {vr(vLane)}")
    a(f"v_lshl_add_u32 {vr(vA0)}, {vr(vT)}, 4, {vr(vA0)}")
    a(f"s_mov_b32 s{sTmp}, {HG}")
    if slC:
        a(f"s_sleep {slC}")

    def bodyC():
        a(f"buffer_load_dwordx4 {vr(vD,4)}, {vr(vA0)}, {srd(srdWS)}, s{sTmp} offen sc1")
        a(f"buffer_load_dwordx4 {vr(vD+4,4)}, {vr(vA0)}, {srd(srdWS)}, s{sTmp} offen offset:2048 sc1")
        a("s_waitcnt vmcnt(0)")
        tagcheck([vD + 1, vD + 3, vD + 5, vD + 7], t0)
        a(f"v_cmp_ne_u32 vcc, 0, {vr(t0)}")
    spin("hC", bodyC)
    stamp(6)
    layernorm([vD, vD + 2, vD + 4, vD + 6], None, [vD + 8 + k for k in range(4)], vXF, vX)
    a(f"ds_write_b128 {vr(vL16)}, {vr(vD+8,4)} offset:{LH}")
    a.label("L_Cpre")
    a(f"v_lshrrev_b32 {vr(vA0)}, 1, v0")
    a(f"v_lshlrev_b32 {vr(vA0)}, 3, {vr(vA0)}")
    a(f"v_lshlrev_b32 {vr(vA2)}, 2, {vr(vLane)}")
    a(f"v_lshlrev_b32 {vr(vA1)}, 1, {vr(vL4)}")
    a(f"s_lshl_b32 s{sTmp2}, s{sIdx}, 11")
    a(f"s_add_u32 s{sTmp2}, s{sTmp2}, {DP}")
    a("s_waitcnt lgkmcnt(0)")
    a("s_barrier")
    a(f"ds_read_b64 {vr(vD,2)}, {vr(vA0)} offset:{LH}")
    a("s_waitcnt lgkmcnt(0)")
    for rp in range(2):
        for m in range(2):
            for c in range(8):
                a(f"v_dot2c_f32_bf16 {vr(acc+8*m+c)}, {vr(wmap[('G', 2*m+rp, c)])}, {vr(vD+rp)}")
    halve(32, [acc + k for k in range(8)], [acc + 8 + k for k in range(8)])
    halve(16, [acc + k for k in range(4)], [acc + 4 + k for k in range(4)])
    halve_dpp(8, [acc, acc + 1], [acc + 2, acc + 3])
    halve_dpp(4, [acc], [acc + 1])
    dpp_steps("v_add_f32", [acc], ["quad_perm:[2,3,0,1]"])
    a(f"ds_write_b32 {vr(vL4)}, {vr(acc)} offset:{LR}")
    a("s_waitcnt lgkmcnt(0)")
    a("s_barrier")
    a(f"ds_read2st64_b32 {vr(vT,2)}, {vr(vA2)} offset0:{LR//256} offset1:{LR//256+1}")
    a(f"ds_read2st64_b32 {vr(vT+2,2)}, {vr(vA2)} offset0:{LR//256+2} offset1:{LR//256+3}")
    a("s_waitcnt lgkmcnt(0)")
    a(f"v_add_f32 {vr(vT)}, {vr(vT)}, {vr(vT+1)}")
    a(f"v_add_f32 {vr(vT+2)}, {vr(vT+2)}, {vr(vT+3)}")
    a(f"v_add_f32 {vr(vT)}, {vr(vT)}, {vr(vT+2)}")
    bf16r(vT, vT)
    a(f"v_mov_b32 {vr(vT+1)}, {vr(vT)}")
    a(f"v_permlane32_swap_b32 {vr(vT)}, {vr(vT+1)}")
    a(f"v_max_f32 {vr(vT)}, 0, {vr(vT)}")
    a(f"v_mul_f32 {vr(vT)}, {vr(vT)}, {vr(vT+1)}")
    a(f"v_mov_b32_dpp {vr(vT+1)}, {vr(vT)} row_ror:12 {DPPF}")
    a(f"v_cvt_pk_bf16_f32 {vr(vT+4)}, {vr(vT)}, {vr(vT+1)}")
    for pr in range(8):
        a(f"v_readlane_b32 s{sP+pr}, {vr(vT+4)}, {(pr>>2) + 8*(pr&1) + 16*((pr>>1)&1)}")
    for pr in range(8):
        for c in range(2):
            a(f"v_dot2c_f32_bf16 {vr(oa+c)}, s{sP+pr}, {vr(wmap[('D', pr, c)])}")
    for c in range(2):
        a(f"v_and_or_b32 {vr(oa+c)}, {vr(oa+c)}, s{sHiM}, {vr(vTC+c)}")
    a(f"buffer_store_dwordx2 {vr(oa,2)}, {vr(vA1)}, {srd(srdWS)}, s{sTmp2} offen sc1")

    a.label("L_fin")
    if stamps:
        stamp(7)
        a("s_mov_b64 exec, -1")
        a("s_waitcnt lgkmcnt(0)")
        for k in range(8):
            a(f"v_mov_b32 {vr(vD+k)}, s{sT+2*k}")
        a(f"s_getreg_b32 s{sTmp}, hwreg(HW_REG_XCC_ID)")
        a(f"v_mov_b32 {vr(vD+8)}, s{sTmp}")
        a(f"v_mov_b32 {vr(vD+9)}, s{sArr}")
        a(f"v_mov_b32 {vr(vD+10)}, s76")
        a(f"v_mov_b32 {vr(vD+11)}, s{sT+16}")
        a(f"s_lshl_b32 s{sTmp}, s2, 2")
        a(f"s_add_u32 s{sTmp}, s{sTmp}, s{sWave}")
        a(f"s_lshl_b32 s{sTmp}, s{sTmp}, 6")
        a(f"s_add_u32 s{sTmp}, s{sTmp}, {TS}")
        a("s_mov_b64 exec, 1")
        for k in range(3):
            a(f"buffer_store_dwordx4 {vr(vD+4*k,4)}, {vr(vZ)}, {srd(srdWS)}, s{sTmp} offen offset:{16*k}")
    a.label("L_end")
    a("s_endpgm")
    a.raw(f""".section .rodata,"a"
.p2align 6
.amdhsa_kernel {NAME}_kernel
  .amdhsa_next_free_vgpr 512
  .amdhsa_next_free_sgpr 102
  .amdhsa_accum_offset 256
  .amdhsa_group_segment_fixed_size 0
  .amdhsa_kernarg_size 96
  .amdhsa_user_sgpr_count 2
  .amdhsa_user_sgpr_kernarg_segment_ptr 1
  .amdhsa_system_sgpr_workgroup_id_x 1
.end_amdhsa_kernel""")
    return a.text()


if __name__ == "__main__":
    import argparse
    ap = argparse.ArgumentParser()
    ap.add_argument("-o", default=f"cdna_kernels/{NAME}.s")
    ap.add_argument("--stamps", action="store_true")
    args = ap.parse_args()
    open(args.o, "w").write(gen(stamps=args.stamps))
```
